```python
import torch

def _softmax(x, axis=-1):
    return torch.softmax(x, dim=axis)
def _gelu(x):
    return torch.nn.functional.gelu(x, approximate="tanh")
def _silu(x):
    return torch.nn.functional.silu(x)
def _sigmoid(x):
    return torch.sigmoid(x)
def _layernorm(x, axis=-1, eps=1e-5):
    m = x.mean(dim=axis, keepdim=True)
    v = x.var(dim=axis, keepdim=True, unbiased=False)
    return (x - m) / torch.sqrt(v + eps)
def _scatter_add(tgt, idx, src, axis=0):
    return tgt.clone().index_add_(axis, idx, src)
def _segment_sum(src, seg, n):
    out = torch.zeros((n,) + src.shape[1:], dtype=src.dtype)
    return out.index_add_(0, seg, src)
def _pad(x, pw):
    flat = tuple(v for pair in reversed(pw) for v in pair)
    return torch.nn.functional.pad(x, flat)

kernel_name = 'standalone__deep_cross_xdeepfm__recsys'

def setup_inputs():

    _w = (lambda a: (lambda t: t.to(torch.bfloat16) if t.is_floating_point() else t)(torch.as_tensor(a)))
    B, F, D, L = 4096, 26, 32, 6
    V = min(100000, 100000)
    Din = F * D
    return {
        "idx": _w((lambda lo, hi, *s: torch.randint(lo, hi, s))(0, V, B, F).to(torch.int64)),
        "table": _w((lambda *s: torch.randn(*s, dtype=torch.bfloat16) * 0.8)(V, D)),
        "ws_cin": _w((lambda *s: torch.randn(*s, dtype=torch.bfloat16) * 0.2)(L, F, F, F) * (1.0 / F)),
        "w_cin_out": _w((lambda *s: torch.randn(*s, dtype=torch.bfloat16) * 0.2)(L * F) * ((L * F) ** -0.5)),
        "w_dnn1": _w((lambda *s: torch.randn(*s, dtype=torch.bfloat16) * 0.8)(Din, Din) * (Din ** -0.5)),
        "b_dnn1": _w((lambda *s: torch.randn(*s, dtype=torch.bfloat16) * 3.2)(Din) * 0.1),
        "w_dnn2": _w((lambda *s: torch.randn(*s, dtype=torch.bfloat16) * 0.2)(Din) * (Din ** -0.5)),
        "b_out": _w((lambda *s: torch.randn(*s, dtype=torch.bfloat16) * 0.2)(1)),
    }

def reference(idx, table, ws_cin, w_cin_out, w_dnn1, b_dnn1, w_dnn2, b_out):
    x0 = table[idx]
    B = x0.shape[0]
    L = ws_cin.shape[0]
    xk = x0
    pooled = []
    for l in range(L):
        xk = torch.einsum('bid,bjd,hij->bhd', xk, x0, ws_cin[l])
        pooled.append(xk.sum(axis=-1))
    p_plus = torch.stack(pooled, axis=1).reshape(B, -1)
    logit_cin = p_plus @ w_cin_out
    h = x0.reshape(B, -1)
    h = _gelu(h @ w_dnn1 + b_dnn1)
    logit_dnn = h @ w_dnn2
    return logit_cin + logit_dnn + b_out
```

```python
import re

TRANS = ("v_exp_f32", "v_log_f32", "v_rcp_f32", "v_rsq_f32", "v_sqrt_f32", "v_sin_f32", "v_cos_f32")

def regs_of(tok):
    t = tok.strip()
    t = t.lstrip("-").strip("|")
    m = re.fullmatch(r"([vsa])(\d+)", t)
    if m:
        return {(m.group(1), int(m.group(2)))}
    m = re.fullmatch(r"([vsa])\[(\d+):(\d+)\]", t)
    if m:
        return {(m.group(1), i) for i in range(int(m.group(2)), int(m.group(3)) + 1)}
    if t in ("vcc", "exec", "m0", "vcc_lo", "vcc_hi", "exec_lo", "exec_hi"):
        return {("x", t.split("_")[0])}
    return set()

class Ins:
    __slots__ = ("text", "op", "kind", "w", "r", "srcc", "srcab", "passes", "states", "dpp", "sdata", "opsel_dst")

def parse(text):
    i = Ins()
    i.text = text
    body = text.split(";")[0].strip()
    parts = body.split(None, 1)
    op = parts[0]
    i.op = op
    rest = parts[1] if len(parts) > 1 else ""
    ops = []
    depth = 0
    cur = ""
    for ch in rest:
        if ch == "[":
            depth += 1
        if ch == "]":
            depth -= 1
        if ch == "," and depth == 0:
            ops.append(cur.strip()); cur = ""
        else:
            cur += ch
    if cur.strip():
        ops.append(cur.strip())
    mods = ""
    if ops:
        sp = ops[-1].split(None, 1)
        ops[-1] = sp[0]
        mods = sp[1] if len(sp) > 1 else ""
    i.w, i.r, i.srcc, i.srcab, i.sdata = set(), set(), set(), set(), set()
    i.passes = 0
    i.states = 1
    i.dpp = ("row_" in mods) or ("quad_perm" in mods) or ("wave_" in mods) or op.endswith("_dpp")
    i.opsel_dst = False
    R = [regs_of(o) for o in ops]
    if op == "s_nop":
        i.kind = "nop"; i.states = int(ops[0], 0) + 1
    elif op.startswith("v_mfma"):
        i.kind = "mfma"
        i.w = R[0]; i.srcab = R[1] | R[2]; i.srcc = R[3]; i.r = i.srcab | i.srcc
        if "32x32x16" in op: i.passes = 8
        elif "16x16x32" in op: i.passes = 4
        elif op == "v_mfma_f32_32x32x2_f32": i.passes = 16; i.kind = "sgemm"
        elif op == "v_mfma_f32_16x16x4_f32": i.passes = 8; i.kind = "sgemm"
        else: raise ValueError(op)
    elif op.startswith("v_cmp"):
        i.kind = "valu"; i.w = R[0]; i.r = set().union(*R[1:])
        if op.startswith("v_cmpx"): i.w |= {("x", "exec")}
    elif op.startswith("v_permlane"):
        i.kind = "valu"; i.w = R[0] | R[1]; i.r = R[0] | R[1]
    elif op.startswith("v_readfirstlane") or op.startswith("v_readlane"):
        i.kind = "valu"; i.w = R[0]; i.r = set().union(*R[1:])
    elif op.startswith("v_"):
        i.kind = "valu"; i.w = R[0]; i.r = set().union(*R[1:]) if len(R) > 1 else set()
        if "_co_" in op:
            i.w = R[0] | R[1]; i.r = set().union(*R[2:])
        if op.startswith(("v_fmac", "v_fma_mixlo", "v_fma_mixhi", "v_writelane")) or i.dpp:
            i.r |= R[0]
        if op.startswith("v_fma_mixhi"):
            i.opsel_dst = True
        if op.startswith("v_cndmask") and len(R) == 3:
            i.r |= {("x", "vcc")}
    elif op.startswith(("buffer_", "global_")):
        i.kind = "vmem"
        if op.startswith(("buffer_inv", "buffer_wbl2")):
            pass
        elif " lds" in (" " + mods) or "_lds_" in op:
            i.r = set().union(*R) | {("x", "m0")}
        elif "load" in op:
            i.w = R[0]; i.r = set().union(*R[1:])
        else:
            i.r = set().union(*R)
            if op.startswith("buffer_"):
                d = R[0]
                if "atomic" in op and "sc0" in mods: i.w = R[0]
            else:
                d = R[1]
            if "x3" in op or "x4" in op: i.sdata = d
    elif op.startswith("ds_"):
        i.kind = "ds"
        if "read" in op or "rtn" in op or "permute" in op or "swizzle" in op:
            i.w = R[0]; i.r = set().union(*R[1:])
        else:
            i.r = set().union(*R)
    elif op.startswith("s_"):
        i.kind = "salu"
        if op.startswith(("s_cmp", "s_cbranch", "s_branch", "s_waitcnt", "s_barrier", "s_endpgm", "s_setprio", "s_sleep")):
            i.r = set().union(*R) if R else set()
        else:
            i.w = R[0] if R else set(); i.r = set().union(*R[1:]) if len(R) > 1 else set()
            if "saveexec" in op: i.w |= {("x", "exec")}
    else:
        raise ValueError("unknown instr: " + text)
    return i

def need(p, c):
    n = 0
    pm = p.kind in ("mfma", "sgemm")
    cm = c.kind in ("mfma", "sgemm")
    vw = {x for x in p.w if x[0] in "va"}
    sw = {x for x in p.w if x[0] in "sx"}
    if p.kind == "valu":
        if cm and (vw & c.r): n = max(n, 2)
        if c.kind == "valu":
            if c.dpp and (vw & c.r): n = max(n, 2)
            if c.op.startswith("v_permlane") and (vw & c.r): n = max(n, 2)
            if c.op.startswith(("v_readfirstlane", "v_readlane")) and (vw & c.r): n = max(n, 1)
            if p.op.startswith(TRANS) and (vw & c.r): n = max(n, 1)
            if p.opsel_dst and (vw & (c.r | c.w)): n = max(n, 1)
            if sw & c.r:
                n = max(n, 4 if c.op.startswith(("v_readlane", "v_writelane")) else 2)
            if ("x", "exec") in p.w:
                if c.dpp: n = max(n, 5)
                if c.op.startswith(("v_readlane", "v_readfirstlane", "v_writelane", "v_permlane")): n = max(n, 4)
        if c.kind == "vmem" and (sw & c.r): n = max(n, 5)
        if c.kind == "salu" and (sw & c.r): n = max(n, 1)
        if cm and ("x", "exec") in p.w: n = max(n, 4)
    if p.kind == "salu" and ("x", "m0") in p.w and c.kind == "vmem" and ("x", "m0") in c.r:
        n = max(n, 1)
    if p.kind == "vmem" and p.sdata and (p.sdata & c.w):
        n = max(n, 2)
    if pm:
        x = p.kind == "mfma"
        tab_ab = {4: 8, 8: 12, 16: 20} if x else {8: 10, 16: 18}
        tab_ov = {4: 6, 8: 10, 16: 18} if x else {8: 8, 16: 16}
        if cm:
            if p.w & c.srcab: n = max(n, tab_ab[p.passes])
            if p.w & c.srcc:
                if not (p.w == c.srcc and p.passes == c.passes and p.kind == c.kind):
                    n = max(n, tab_ov[p.passes])
            elif p.w & c.w:
                n = max(n, tab_ov[p.passes])
        else:
            if p.w & (c.r | c.w): n = max(n, tab_ab[p.passes])
            if x and c.kind == "valu" and (p.srcc & c.w): n = max(n, {4: 3, 8: 7, 16: 15}[p.passes])
            if x and c.kind in ("ds", "vmem") and (p.srcc & c.w): n = max(n, {4: 3, 8: 7, 16: 15}[p.passes])
    return n

class Asm:
    def __init__(self):
        self.lines = []
        self.hist = []
        self.nops = 0
        self.ninstr = 0
    def raw(self, s):
        self.lines.append(s)
    def label(self, name):
        self.lines.append(name + ":")
    def reset_hist(self):
        self.hist = []
    def __call__(self, text):
        for t in text.strip().split("\n"):
            t = t.strip()
            if not t or t.startswith(";"):
                if t: self.lines.append("    " + t)
                continue
            if t.endswith(":"):
                self.lines.append(t); continue
            c = parse(t)
            dist = 0
            pad = 0
            for p in reversed(self.hist):
                k = need(p, c)
                if k > dist: pad = max(pad, k - dist)
                dist += p.states
                if dist >= 24: break
            while pad > 0:
                k = min(pad, 16)
                nop = parse("s_nop %d" % (k - 1))
                self.lines.append("    s_nop %d" % (k - 1))
                self.hist.append(nop)
                self.nops += 1
                pad -= k
            self.lines.append("    " + t)
            self.hist.append(c)
            self.ninstr += 1
            if len(self.hist) > 64: self.hist = self.hist[-40:]
    def text(self):
        return "\n".join(self.lines) + "\n"

class Regs:
    def __init__(self, kind, start, limit):
        self.kind, self.next, self.limit = kind, start, limit
        self.high = start
    def alloc(self, n=1, align=1):
        a = (self.next + align - 1) // align * align
        self.next = a + n
        assert self.next <= self.limit, "out of %s regs" % self.kind
        self.high = max(self.high, self.next)
        return a

def vr(a, n=1):
    return "v%d" % a if n == 1 else "v[%d:%d]" % (a, a + n - 1)
def sr(a, n=1):
    return "s%d" % a if n == 1 else "s[%d:%d]" % (a, a + n - 1)
```

```python
import numpy as np
F, D, L = 26, 32, 6
FRAG = 832
Q0_F, L_F, Q1_F, LIN_F = 0, 23, 23 + 3 * 43, 23 + 3 * 43 + 23
NFRAG = LIN_F + 2
WS_EXP = 0x30000
WS_PART = 0x40000

def bf16_to_f32(u16):
    return (u16.astype(np.uint32) << 16).view(np.float32)
def f32_to_bf16(x):
    u = np.ascontiguousarray(x, dtype=np.float32).view(np.uint32)
    return ((u + 0x7FFF + ((u >> 16) & 1)) >> 16).astype(np.uint16)

def gelu(z):
    return 0.5 * z * (1 + np.tanh(0.7978845608028654 * (z + 0.044715 * z ** 3)))

def reference64(idx, table, W, wout, w1, b1, w2, bout):
    x0 = table[idx].astype(np.float64)
    xk = x0
    S = np.zeros(x0.shape[0])
    for l in range(L):
        T = np.einsum('bjd,hij->bhid', x0, W[l].astype(np.float64))
        xk = np.einsum('bhid,bid->bhd', T, xk)
        S += xk.sum(-1) @ wout[26 * l:26 * l + 26].astype(np.float64)
    h = gelu(x0.reshape(x0.shape[0], -1) @ w1.astype(np.float64) + b1)
    dnn = h @ w2.astype(np.float64)
    return S, dnn, S + dnn + bout[0]

def feat(r, kh, b):
    d, s = divmod(r, 13)
    t = (s + d) % 13
    a = 2 * s + b
    bb = 2 * t + (b if kh == 0 else 1 - b)
    return a, bb, (0.5 if d == 0 else 1.0)

def expo_lt(m):
    be = (np.float32(m).view(np.uint32) >> 23) & 0xff
    return int(be) - 126

def prep(W, wout):
    W = W.astype(np.float64); wout = wout.astype(np.float64)
    fr = np.zeros((NFRAG, 2, 26, 8))
    ex = {}
    for l in (1, 2, 3):
        e = min(15 - expo_lt(np.abs(W[l]).max()), 126)
        ex["W%d" % l] = e
        flat = W[l].reshape(26, 676)
        for s in range(43):
            for kh in range(2):
                for q in range(8):
                    sg = 8 * s + q
                    if sg < 338:
                        fr[L_F + 43 * (l - 1) + s, kh, :, q] = flat[:, 338 * kh + sg] * 2.0 ** e
    M6 = np.einsum('g,ghk->hk', wout[130:156], W[5])
    Q5 = np.einsum('hij,hk->ijk', W[4], M6)
    L5 = np.einsum('hij,h->ij', W[4], wout[104:130])
    eQ0 = 14 - expo_lt(np.abs(W[0]).max())
    eQ1 = 15 - 6 - expo_lt(np.abs(W[4]).max()) - expo_lt(np.abs(M6).max())
    ex["Q0"], ex["Q1"] = eQ0, eQ1
    for base, C, e in ((Q0_F, W[0], eQ0), (Q1_F, Q5, eQ1)):
        for s in range(23):
            for kh in range(2):
                for q in range(8):
                    r = 4 * s + (q >> 1)
                    if r < 91:
                        a, bb, f = feat(r, kh, q & 1)
                        fr[base + s, kh, :, q] = f * (C[:, a, bb] + C[:, bb, a]) * 2.0 ** e
    for s in range(2):
        for kh in range(2):
            for q in range(8):
                p = 4 * s + (q >> 1)
                j = 2 * (p + 7 * kh) + (q & 1)
                if p <= 6 - kh:
                    fr[LIN_F + s, kh, :, q] = L5[:, j]
    return fr, ex

def cin_emul(x0, fr, ex, wout, rnd=True):
    f16 = (lambda a: a.astype(np.float16).astype(np.float64)) if rnd else (lambda a: a)
    bf = (lambda a: bf16_to_f32(f32_to_bf16(a.astype(np.float32))).astype(np.float64)) if rnd else (lambda a: a)
    wout = wout.astype(np.float64)
    B = x0.shape[0]
    x = x0.transpose(0, 2, 1).reshape(-1, 26).astype(np.float64)
    e = np.frexp(np.abs(x).max(1))[1]
    exs = np.minimum(7 - e, 126)
    X = f16(x * 2.0 ** exs[:, None])
    phi = np.zeros((x.shape[0], 23, 2, 8))
    for s in range(23):
        for kh in range(2):
            for q in range(8):
                r = 4 * s + (q >> 1)
                if r < 91:
                    a, bb, f = feat(r, kh, q & 1)
                    phi[:, s, kh, q] = f16(X[:, a] * X[:, bb])
    acc = np.einsum('nskq,skhq->nh', phi, f16(fr[Q0_F:Q0_F + 23]))
    E = -(2 * exs + ex["Q0"])
    S = np.zeros(x.shape[0])
    for l in (1, 2, 3):
        S += (acc @ wout[26 * (l - 1):26 * l]) * 2.0 ** E
        su = np.minimum(8 - np.frexp(np.abs(acc).max(1))[1], 126)
        U = f16(acc * 2.0 ** su[:, None])
        Z = f16(U[:, :, None] * X[:, None, :]).reshape(-1, 2, 338)
        Zp = np.zeros((x.shape[0], 2, 344)); Zp[:, :, :338] = Z
        Zp = Zp.reshape(-1, 2, 43, 8)
        acc = np.einsum('nksq,skhq->nh', Zp, f16(fr[L_F + 43 * (l - 1):L_F + 43 * l]))
        E = E - su - exs - ex["W%d" % l]
    accg = np.einsum('nskq,skhq->nh', phi, f16(fr[Q1_F:Q1_F + 23]))
    Fb = np.zeros((x.shape[0], 2, 2, 8))
    for s in range(2):
        for kh in range(2):
            for q in range(8):
                p = 4 * s + (q >> 1)
                j = 2 * (p + 7 * kh) + (q & 1)
                if p <= 6 - kh:
                    Fb[:, s, kh, q] = x[:, j]
    accL = np.einsum('nskq,skhq->nh', Fb, bf(fr[LIN_F:LIN_F + 2])) + wout[78:104]
    g4 = accg * 2.0 ** (-(2 * exs + ex["Q1"]))[:, None] + accL
    S += (g4 * acc).sum(1) * 2.0 ** E
    return S.reshape(B, 32).sum(1)

if __name__ == "__main__":
    rng = np.random.default_rng(0)
    rb = lambda *s: bf16_to_f32(f32_to_bf16(rng.standard_normal(s).astype(np.float32)))
    q = lambda a: bf16_to_f32(f32_to_bf16(a))
    for scale_x, scale_w in ((0.8, 0.2 / 26), (5.0, 0.2 / 26), (1e-3, 30.0), (300.0, 1e-4)):
        B = 64
        idx = rng.integers(0, 1000, (B, 26))
        table = q(rb(1000, 32) * scale_x)
        W = q(rb(6, 26, 26, 26) * scale_w)
        wout = q(rb(156) * 0.2 / 156 ** 0.5)
        w1 = q(rb(832, 832) * 0.8 / 832 ** 0.5); b1 = q(rb(832) * 0.32); w2 = q(rb(832) * 0.2 / 832 ** 0.5); bo = q(rb(1) * 0.2)
        S, dnn, tot = reference64(idx, table, W, wout, w1, b1, w2, bo)
        fr, ex = prep(W, wout)
        S0 = cin_emul(table[idx], fr, ex, wout, rnd=False)
        S1 = cin_emul(table[idx], fr, ex, wout, rnd=True)
        print(ex, "exact err", np.abs(S0 - S).max() / np.abs(S).max(), "rounded err", np.abs(S1 - S).max() / np.abs(S).max(), "S rms", S.std(), "max frag", np.abs(fr[:LIN_F]).max(), np.abs(fr[Q1_F:LIN_F]).max())
```

```python
import sys, struct
from asmlib import Asm, vr, sr
from model import FRAG, Q0_F, L_F, Q1_F, LIN_F, NFRAG, WS_EXP, WS_PART

NAME = "standalone__deep_cross_xdeepfm__recsys"
def fbits(x): return "0x%08x" % struct.unpack("<I", struct.pack("<f", x))[0]
SZ = dict(idx=4096 * 26 * 4, table=100000 * 64, wcin=6 * 35152, wout=312, w1=832 * 832 * 2, b1=1664, w2=1664, bout=2, out=8192)
KOFF = dict(idx=0, table=8, wcin=16, wout=24, w1=32, b1=40, w2=48, bout=56, out=64, dbg=72, ws=80)
def kp(name): return 64 + KOFF[name] // 4

def srd(a, d, name, size=None, off=0):
    p = kp(name)
    if off:
        a("s_add_u32 s%d, s%d, 0x%x" % (d, p, off))
        a("s_addc_u32 s%d, s%d, 0" % (d + 1, p + 1))
    else:
        a("s_mov_b32 s%d, s%d" % (d, p))
        a("s_mov_b32 s%d, s%d" % (d + 1, p + 1))
    a("s_mov_b32 s%d, 0x%x" % (d + 2, size if size is not None else SZ[name]))
    a("s_mov_b32 s%d, 0x20000" % (d + 3))

def prologue(a, tag):
    a("s_cmp_ge_u32 s2, 256")
    a("s_cbranch_scc1 L_end_%s" % tag)
    a("s_load_dwordx16 s[64:79], s[0:1], 0")
    a("s_load_dwordx4 s[80:83], s[0:1], 64")
    a("s_load_dwordx2 s[84:85], s[0:1], 80")
    a("v_lshrrev_b32 v2, 6, v0")
    a("v_and_b32 v1, 63, v0")
    a("v_readfirstlane_b32 s3, v2")
    a("s_and_b32 s4, s2, 7")
    a("s_lshl_b32 s4, s4, 2")
    a("s_lshr_b32 s5, s2, 6")
    a("s_add_u32 s4, s4, s5")
    a("s_bfe_u32 s5, s2, 0x30003")
    a("s_waitcnt lgkmcnt(0)")

def wave_max_u32(a, v, t):
    for sh in (1, 2, 4, 8):
        a("v_max_u32_dpp %s, %s, %s row_shr:%d row_mask:0xf bank_mask:0xf" % (vr(v), vr(v), vr(v), sh))
    a("v_max_u32_dpp %s, %s, %s row_bcast:15 row_mask:0xa bank_mask:0xf" % (vr(v), vr(v), vr(v)))
    a("v_max_u32_dpp %s, %s, %s row_bcast:31 row_mask:0xc bank_mask:0xf" % (vr(v), vr(v), vr(v)))

def wg_max_publish(a, v, t, lds_off):
    wave_max_u32(a, v, t)
    a("v_readlane_b32 s6, %s, 63" % vr(v))
    a("s_lshl_b32 s7, s3, 2")
    a("v_mov_b32 %s, s7" % vr(t))
    a("v_mov_b32 %s, s6" % vr(v))
    a("ds_write_b32 %s, %s offset:%d" % (vr(t), vr(v), lds_off))

def wg_max_collect(a, dst_s, q, lds_off):
    a("v_mov_b32 %s, 0" % vr(q + 7))
    a("ds_read_b128 %s, %s offset:%d" % (vr(q, 4), vr(q + 7), lds_off))
    a("ds_read_b128 %s, %s offset:%d" % (vr(q + 4, 4), vr(q + 7), lds_off + 16))
    a("s_waitcnt lgkmcnt(0)")
    a("v_max3_u32 %s, %s, %s, %s" % (vr(q), vr(q), vr(q + 1), vr(q + 2)))
    a("v_max3_u32 %s, %s, %s, %s" % (vr(q + 3), vr(q + 3), vr(q + 4), vr(q + 5)))
    a("v_max3_u32 %s, %s, %s, %s" % (vr(q), vr(q), vr(q + 6), vr(q + 7)))
    a("v_max_u32 %s, %s, %s" % (vr(q), vr(q), vr(q + 3)))
    a("v_readfirstlane_b32 s%d, %s" % (dst_s, vr(q)))

def pk_absmax(a, acc, regs, tmp, first=True):
    for k, r in enumerate(regs):
        if k == 0 and first:
            a("v_and_b32 %s, 0x7fff7fff, %s" % (vr(acc), vr(r)))
        else:
            a("v_and_b32 %s, 0x7fff7fff, %s" % (vr(tmp), vr(r)))
            a("v_pk_max_u16 %s, %s, %s" % (vr(acc), vr(acc), vr(tmp)))
    a("v_lshrrev_b32 %s, 16, %s" % (vr(tmp), vr(acc)))
    a("v_and_b32 %s, 0xffff, %s" % (vr(acc), vr(acc)))
    a("v_max_u32 %s, %s, %s" % (vr(acc), vr(acc), vr(tmp)))

def div52(a, P, s, kh, h, t):
    a("v_mul_u32_u24 %s, 5042, %s" % (vr(s), vr(P)))
    a("v_lshrrev_b32 %s, 18, %s" % (vr(s), vr(s)))
    a("v_mul_u32_u24 %s, 52, %s" % (vr(t), vr(s)))
    a("v_sub_u32 %s, %s, %s" % (vr(h), vr(P), vr(t)))
    a("v_mul_u32_u24 %s, 10, %s" % (vr(kh), vr(h)))
    a("v_lshrrev_b32 %s, 8, %s" % (vr(kh), vr(kh)))
    a("v_mul_u32_u24 %s, 26, %s" % (vr(t), vr(kh)))
    a("v_sub_u32 %s, %s, %s" % (vr(h), vr(h), vr(t)))
assert all((n * 5042) >> 18 == n // 52 for n in range(2600))

def feat_idx(a, r, kh, sa, tb0, tb1, dl, t):
    a("v_mul_u32_u24 %s, 79, %s" % (vr(dl), vr(r)))
    a("v_lshrrev_b32 %s, 10, %s" % (vr(dl), vr(dl)))
    a("v_mul_u32_u24 %s, 13, %s" % (vr(t), vr(dl)))
    a("v_sub_u32 %s, %s, %s" % (vr(sa), vr(r), vr(t)))
    a("v_add_u32 %s, %s, %s" % (vr(tb0), vr(sa), vr(dl)))
    a("v_subrev_u32 %s, 13, %s" % (vr(t), vr(tb0)))
    a("v_min_u32 %s, %s, %s" % (vr(tb0), vr(tb0), vr(t)))
    a("v_lshlrev_b32 %s, 1, %s" % (vr(sa), vr(sa)))
    a("v_lshl_add_u32 %s, %s, 1, %s" % (vr(tb0), vr(tb0), vr(kh)))
    a("v_xor_b32 %s, 1, %s" % (vr(tb1), vr(tb0)))
    a("v_min_u32 %s, 1, %s" % (vr(dl), vr(dl)))
    a("v_xor_b32 %s, 1, %s" % (vr(dl), vr(dl)))

ST = ""

def store_exp(a, sval, slot, t0, t1):
    a("v_mov_b32 %s, s%d" % (vr(t0), sval))
    a("v_mov_b32 %s, 0x%x" % (vr(t1), WS_EXP + 4 * slot) if isinstance(slot, int) else "v_mov_b32 %s, s%d" % (vr(t1), slot[0]))
    a("v_cmp_eq_u32 vcc, 0, v0")
    a("s_and_saveexec_b64 s[6:7], vcc")
    a("buffer_store_dword %s, %s, s[12:15], 0 offen%s" % (vr(t0), vr(t1), ST))
    a("s_mov_b64 exec, s[6:7]")

def prep(a):
    srd(a, 8, "wcin")
    srd(a, 12, "ws", size=WS_PART)
    a("s_cmp_ge_u32 s4, 6")
    a("s_cbranch_scc1 L_prep_c")
    a("s_cmp_ge_u32 s4, 3")
    a("s_cbranch_scc1 L_prep_b")
    a("s_add_u32 s16, s4, 1")
    a("s_mul_i32 s16, s16, 35152")
    D = 32
    for it in range(5):
        a("v_add_u32 v10, %d, v0" % (512 * it))
        div52(a, 10, 11, 12, 13, 14)
        a("v_mul_u32_u24 v13, 1352, v13")
        a("v_mul_u32_u24 v12, 676, v12")
        a("v_lshlrev_b32 v14, 4, v11")
        a("v_add3_u32 v13, v13, v12, v14")
        if it == 4:
            a("v_cmp_gt_u32 vcc, 43, v11")
            a("v_mov_b32 v14, 0x7ffffff0")
            a("v_cndmask_b32 v13, v14, v13, vcc")
            a("v_cmp_gt_u32 s[18:19], 42, v11")
        a("buffer_load_dwordx4 %s, v13, s[8:11], s16 offen" % vr(D + 4 * it, 4))
    a("s_waitcnt vmcnt(0)")
    for k in (1, 2, 3):
        a("v_cndmask_b32 %s, 0, %s, s[18:19]" % (vr(D + 16 + k), vr(D + 16 + k)))
    pk_absmax(a, 15, list(range(D, D + 20)), 14)
    wg_max_publish(a, 15, 14, 0)
    a("s_waitcnt lgkmcnt(0)")
    a("s_barrier")
    wg_max_collect(a, 17, 16, 0)
    a("s_lshr_b32 s17, s17, 7")
    a("s_sub_i32 s17, 141, s17")
    a("s_min_i32 s17, s17, 126")
    a("s_add_i32 s18, s17, 127")
    a("s_lshl_b32 s18, s18, 23")
    for k in range(20):
        a("v_lshlrev_b32 v%d, 16, %s" % (60 + k, vr(D + k)))
        a("v_and_b32 %s, 0xffff0000, %s" % (vr(D + k), vr(D + k)))
        a("v_mul_f32 v%d, s18, v%d" % (60 + k, 60 + k))
        a("v_mul_f32 %s, s18, %s" % (vr(D + k), vr(D + k)))
        a("v_cvt_pk_f16_f32 %s, v%d, %s" % (vr(D + k), 60 + k, vr(D + k)))
    a("s_mul_i32 s19, s4, %d" % (43 * FRAG))
    a("s_add_u32 s19, s19, %d" % (L_F * FRAG))
    a("v_lshlrev_b32 v10, 4, v0")
    for it in range(4):
        a("buffer_store_dwordx4 %s, v10, s[12:15], s19 offen%s" % (vr(D + 4 * it, 4), ST)) if it == 0 else None
        if it:
            a("v_add_u32 v11, %d, v10" % (8192 * it))
            a("buffer_store_dwordx4 %s, v11, s[12:15], s19 offen%s" % (vr(D + 4 * it, 4), ST))
    a("v_add_u32 v11, %d, v10" % (8192 * 4))
    a("v_cmp_gt_u32 vcc, %d, v0" % (2236 - 2048))
    a("v_mov_b32 v14, 0x7ffffff0")
    a("v_cndmask_b32 v11, v14, v11, vcc")
    a("buffer_store_dwordx4 %s, v11, s[12:15], s19 offen%s" % (vr(D + 16, 4), ST))
    a("s_lshl_b32 s19, s4, 2")
    a("s_add_u32 s19, s19, 0x%x" % (WS_EXP + 4))
    store_exp(a, 17, (19,), 12, 13)
    a("s_branch L_prep_done")
    a.label("L_prep_b"); a.reset_hist()
    a("v_lshlrev_b32 v10, 4, v0")
    for it in range(5):
        a("v_add_u32 v11, %d, v10" % (8192 * it))
        if it == 4:
            a("v_cmp_gt_u32 vcc, 35152, v11")
            a("v_mov_b32 v14, 0x7ffffff0")
            a("v_cndmask_b32 v11, v14, v11, vcc")
        a("buffer_load_dwordx4 %s, v11, s[8:11], 0 offen" % vr(D + 4 * it, 4))
    div52(a, 0, 11, 12, 13, 14)
    a("s_sub_u32 s16, s4, 3")
    a("s_lshl_b32 s16, s16, 3")
    a("v_add_u32 v11, s16, v11")
    a("v_mul_u32_u24 v20, 1352, v13")
    a("v_add_u32 v20, 64, v20")
    for q in range(4):
        a("v_lshl_add_u32 v15, v11, 2, %d" % q)
        a("v_min_u32 v15, 90, v15")
        feat_idx(a, 15, 12, 16, 17, 18, 76 + q, 14)
        for b in range(2):
            tb = 17 + b
            if b: a("v_add_u32 v16, 1, v16")
            a("v_mad_u32_u24 v14, v16, 26, v%d" % tb)
            a("v_lshl_add_u32 v%d, v14, 1, v20" % (60 + 4 * q + 2 * b))
            a("v_mad_u32_u24 v14, v%d, 26, v16" % tb)
            a("v_lshl_add_u32 v%d, v14, 1, v20" % (61 + 4 * q + 2 * b))
    a("s_waitcnt vmcnt(0)")
    for it in range(5):
        a("ds_write_b128 v10, %s offset:%d" % (vr(D + 4 * it, 4), 64 + 8192 * it))
    pk_absmax(a, 15, list(range(D, D + 20)), 14)
    wg_max_publish(a, 15, 14, 0)
    a("s_waitcnt lgkmcnt(0)")
    a("s_barrier")
    for k in range(16):
        a("v_mov_b32 v%d, 0" % (80 + k))
    for k in range(16):
        a("ds_read_u16_d16_hi v%d, v%d" % (80 + k, 60 + k))
    wg_max_collect(a, 17, 24, 0)
    a("s_lshr_b32 s17, s17, 7")
    a("s_sub_i32 s17, 140, s17")
    for q in range(4):
        a("v_sub_u32 v%d, s17, v%d" % (76 + q, 76 + q))
    for k in range(8):
        a("v_add_f32 v%d, v%d, v%d" % (80 + 2 * k, 80 + 2 * k, 81 + 2 * k))
        a("v_ldexp_f32 v%d, v%d, v%d" % (80 + 2 * k, 80 + 2 * k, 76 + k // 2))
    for q in range(4):
        a("v_cvt_pk_f16_f32 v%d, v%d, v%d" % (D + q, 80 + 4 * q, 82 + 4 * q))
    a("v_cmp_gt_u32 vcc, 22, v11")
    a("v_cndmask_b32 v%d, 0, v%d, vcc" % (D + 3, D + 3))
    a("s_mul_i32 s19, s16, %d" % FRAG)
    a("v_cmp_gt_u32 vcc, 23, v11")
    a("v_cmp_gt_u32 s[20:21], 416, v0") if False else None
    a("v_mov_b32 v14, 0x7ffffff0")
    a("v_cndmask_b32 v10, v14, v10, vcc")
    a("v_cmp_gt_u32 vcc, 416, v0")
    a("v_cndmask_b32 v10, v14, v10, vcc")
    a("buffer_store_dwordx4 %s, v10, s[12:15], s19 offen%s" % (vr(D, 4), ST))
    a("s_cmp_lg_u32 s4, 3")
    a("s_cbranch_scc1 L_prep_done")
    store_exp(a, 17, 0, 12, 13)
    a("s_branch L_prep_done")
    a.label("L_prep_c"); a.reset_hist()
    a("s_load_dwordx16 s[20:35], s[%d:%d], 208" % (kp("wout"), kp("wout") + 1))
    a("s_load_dwordx8 s[36:43], s[%d:%d], 272" % (kp("wout"), kp("wout") + 1))
    a("s_load_dwordx2 s[44:45], s[%d:%d], 304" % (kp("wout"), kp("wout") + 1))
    a("s_sub_u32 s16, s4, 6")
    a("v_lshlrev_b32 v10, 2, v0")
    a("v_cmp_gt_u32 vcc, 338, v0")
    a("v_mov_b32 v14, 0x7ffffff0")
    a("v_cndmask_b32 v10, v14, v10, vcc")
    for hp in range(26):
        a("s_mov_b32 s17, %d" % (5 * 35152 + hp * 1352))
        a("buffer_load_dword v%d, v10, s[8:11], s17 offen" % (32 + hp))
    a("v_lshlrev_b32 v11, 4, v0")
    a("s_mov_b32 s17, %d" % (4 * 35152))
    for it in range(5):
        a("v_add_u32 v12, %d, v11" % (8192 * it))
        if it == 4:
            a("v_cmp_gt_u32 vcc, 35152, v12")
            a("v_cndmask_b32 v12, v14, v12, vcc")
        a("buffer_load_dwordx4 %s, v12, s[8:11], s17 offen" % vr(60 + 4 * it, 4))
    a("v_and_b32 v12, 31, v1")
    a("v_lshrrev_b32 v13, 5, v1")
    a("v_mul_u32_u24 v15, 1352, v13")
    a("v_lshl_add_u32 v15, v12, 1, v15")
    a("v_cmp_gt_u32 vcc, 26, v12")
    a("v_cndmask_b32 v15, v14, v15, vcc")
    a("s_mul_i32 s18, s16, 52")
    a("s_add_u32 s18, s18, %d" % (4 * 35152))
    for st in range(13):
        a("v_mov_b32 v%d, 0" % (80 + st))
    for st in range(13):
        a("s_add_u32 s17, s18, %d" % (st * 2704))
        a("buffer_load_short_d16_hi v%d, v15, s[8:11], s17 offen" % (80 + st))
    a("v_lshlrev_b32 v21, 7, v13")
    a("v_lshl_add_u32 v21, v12, 2, v21")
    a("v_mul_u32_u24 v16, 5042, v0")
    a("v_lshrrev_b32 v16, 16, v16")
    a("v_mul_u32_u24 v17, 13, v16")
    a("v_sub_u32 v17, v0, v17")
    a("v_lshlrev_b32 v20, 7, v16")
    a("v_lshl_add_u32 v20, v17, 3, v20")
    a("s_waitcnt lgkmcnt(0)")
    a("s_waitcnt vmcnt(18)")
    for hp in range(26):
        sw = 33 + hp // 2
        a(("s_and_b32 s17, s%d, 0xffff0000" % sw) if hp & 1 else ("s_lshl_b32 s17, s%d, 16" % sw))
        a("v_lshlrev_b32 v18, 16, v%d" % (32 + hp))
        a("v_and_b32 v19, 0xffff0000, v%d" % (32 + hp))
        if hp == 0:
            a("v_mul_f32 v22, s17, v18")
            a("v_mul_f32 v23, s17, v19")
        else:
            a("v_fmac_f32 v22, s17, v18")
            a("v_fmac_f32 v23, s17, v19")
    a("v_cmp_gt_u32 vcc, 338, v0")
    a("s_and_saveexec_b64 s[6:7], vcc")
    a("ds_write_b64 v20, v[22:23] offset:1024")
    a("s_mov_b64 exec, s[6:7]")
    a("v_and_b32 v22, 0x7fffffff, v22")
    a("v_and_b32 v23, 0x7fffffff, v23")
    a("v_max_u32 v22, v22, v23")
    wg_max_publish(a, 22, 18, 0)
    for h in range(26):
        sw = 20 + h // 2
        a(("s_and_b32 s17, s%d, 0xffff0000" % sw) if h & 1 else ("s_lshl_b32 s17, s%d, 16" % sw))
        a("v_writelane_b32 v24, s17, %d" % h)
    a("v_lshlrev_b32 v25, 7, v1")
    a("v_cmp_gt_u32 vcc, 26, v0")
    a("s_and_saveexec_b64 s[6:7], vcc")
    a("ds_write_b32 v25, v24 offset:%d" % (1024 + 104))
    a("s_mov_b64 exec, s[6:7]")
    a("s_waitcnt vmcnt(13)")
    pk_absmax(a, 22, list(range(60, 80)), 18)
    wg_max_publish(a, 22, 18, 32)
    a("s_waitcnt lgkmcnt(0)")
    a("s_barrier")
    a("s_cmp_lg_u32 s3, 0")
    a("s_cbranch_scc1 L_prep_done")
    for st in range(13):
        a("ds_read_b32 v%d, v21 offset:%d" % (96 + st, 1024 + 256 * st))
    wg_max_collect(a, 17, 24, 0)
    wg_max_collect(a, 18, 24, 32)
    a("s_lshr_b32 s17, s17, 23")
    a("s_lshr_b32 s18, s18, 7")
    a("s_add_u32 s17, s17, s18")
    a("s_sub_i32 s17, %d, s17" % (9 + 252))
    a("s_waitcnt vmcnt(0)")
    for st in range(13):
        a("v_mfma_f32_32x32x2_f32 v[32:47], v%d, v%d, %s" % (80 + st, 96 + st, "0" if st == 0 else "v[32:47]"))
        a("v_mfma_f32_32x32x2_f32 v[32:47], v%d, v%d, v[32:47]" % (96 + st, 80 + st))
    a("v_lshrrev_b32 v11, 1, v1")
    a("v_and_b32 v12, 1, v1")
    for q in range(4):
        a("v_lshl_add_u32 v15, v11, 2, %d" % q)
        a("v_min_u32 v15, 90, v15")
        feat_idx(a, 15, 12, 16, 17, 18, 76 + q, 19)
        for b in range(2):
            if b: a("v_add_u32 v16, 1, v16")
            a("v_lshlrev_b32 v19, 7, v16")
            a("v_lshl_add_u32 v%d, v%d, 2, v19" % (60 + 2 * q + b, 17 + b))
        a("v_sub_u32 v%d, s17, v%d" % (76 + q, 76 + q))
    a("v_subrev_u32 v15, 23, v11")
    a("v_lshlrev_b32 v15, 3, v15")
    a("v_mad_u32_u24 v15, v12, 14, v15")
    a("v_lshlrev_b32 v15, 7, v15")
    a("v_cmp_lt_u32 s[18:19], 22, v11")
    for e in range(8):
        a("v_add_u32 v16, %d, v15" % (128 * e + 104))
        a("v_and_b32 v16, 0xfff, v16")
        a("v_cndmask_b32 v%d, v%d, v16, s[18:19]" % (60 + e, 60 + e))
    a("v_and_b32 v20, 31, v1")
    a("v_lshlrev_b32 v20, 2, v20")
    a("v_lshl_add_u32 v20, v13, 9, v20")
    for v in range(16):
        a("ds_write_b32 v20, v%d offset:%d" % (32 + v, 8192 + 128 * (8 * (v >> 2) + (v & 3))))
    a("s_waitcnt lgkmcnt(0)")
    for e in range(8):
        a("ds_read_b32 v%d, v%d offset:8192" % (48 + e, 60 + e))
    a("s_waitcnt lgkmcnt(0)")
    for q in range(4):
        a("v_cvt_pk_bf16_f32 v%d, v%d, v%d" % (68 + q, 48 + 2 * q, 49 + 2 * q))
    for e in range(8):
        a("v_ldexp_f32 v%d, v%d, v%d" % (48 + e, 48 + e, 76 + e // 2))
    for q in range(4):
        a("v_cvt_pk_f16_f32 v%d, v%d, v%d" % (32 + q, 48 + 2 * q, 49 + 2 * q))
        a("v_cndmask_b32 v%d, v%d, v%d, s[18:19]" % (32 + q, 32 + q, 68 + q))
    a("v_cmp_ne_u32 vcc, 22, v11")
    a("v_cndmask_b32 v35, 0, v35, vcc")
    a("v_cmp_ne_u32 vcc, 24, v11")
    a("v_cndmask_b32 v35, 0, v35, vcc")
    a("v_cmp_ne_u32 vcc, 49, v1")
    a("v_cndmask_b32 v34, 0, v34, vcc")
    a("v_mul_u32_u24 v10, 416, v1")
    a("v_cmp_gt_u32 vcc, 50, v1")
    a("v_cndmask_b32 v10, v14, v10, vcc")
    a("s_lshl_b32 s19, s16, 4")
    a("s_add_u32 s19, s19, %d" % (Q1_F * FRAG))
    a("buffer_store_dwordx4 v[32:35], v10, s[12:15], s19 offen%s" % ST)
    a("s_cmp_lg_u32 s16, 0")
    a("s_cbranch_scc1 L_prep_done")
    store_exp(a, 17, 4, 12, 13)
    a.label("L_prep_done"); a.reset_hist()

RING, DEPTH = 6, 5
DNN_TAB = RING * 16384
def dnn(a):
    srd(a, 8, "table"); srd(a, 12, "w1"); srd(a, 16, "idx"); srd(a, 20, "b1"); srd(a, 24, "w2")
    IDX = 32
    a("s_lshl_b32 s28, s4, 7")
    a("s_lshl_b32 s29, s3, 4")
    a("s_add_u32 s28, s28, s29")
    a("v_lshrrev_b32 v3, 2, v1")
    a("v_add_u32 v3, s28, v3")
    a("v_mul_u32_u24 v3, 104, v3")
    for k in range(6):
        a("buffer_load_dwordx4 %s, v3, s[16:19], 0 offen offset:%d" % (vr(IDX + 4 * k, 4), 16 * k))
    a("buffer_load_dwordx2 %s, v3, s[16:19], 0 offen offset:96" % vr(IDX + 24, 2))
    a("v_and_b32 v4, 127, v0")
    a("v_lshlrev_b32 v4, 1, v4")
    a("s_lshl_b32 s29, s5, 8")
    a("v_mov_b32 v58, 0")
    a("v_mov_b32 v59, 0")
    a("buffer_load_short_d16_hi v58, v4, s[20:23], s29 offen")
    a("buffer_load_short_d16_hi v59, v4, s[24:27], s29 offen")
    a("v_lshrrev_b32 v6, 4, v1")
    a("v_bfe_u32 v7, v1, 2, 2")
    a("v_xor_b32 v7, v7, v6")
    a("v_lshlrev_b32 v7, 6, v7")
    a("v_and_b32 v8, 3, v1")
    a("v_lshl_add_u32 v7, v8, 4, v7")
    a("v_xor_b32 v9, v6, v8")
    a("v_lshlrev_b32 v9, 4, v9")
    a("s_lshl_b32 s30, s3, 2")
    a("v_add_u32 v6, s30, v6")
    a("v_mul_u32_u24 v6, 1664, v6")
    a("v_add3_u32 v6, v6, v7, s29")
    a("s_lshl_b32 s31, s3, 10")
    def dma_w(t):
        a("s_add_u32 m0, s31, %d" % ((t % RING) * 16384 + 8192))
        a("s_mov_b32 s30, %d" % (t * 32 * 1664))
        a("buffer_load_dwordx4 v6, s[12:15], s30 offen lds")
    def dma_x(t):
        a("v_lshl_add_u32 v10, v%d, 6, v9" % (IDX + t))
        a("s_add_u32 m0, s31, %d" % ((t % RING) * 16384))
        a("buffer_load_dwordx4 v10, s[8:11], 0 offen lds")
    for t in range(DEPTH): dma_w(t)
    a("s_and_b32 s32, s3, 3")
    a("s_lshr_b32 s33, s3, 2")
    a("v_and_b32 v11, 31, v1")
    a("v_lshrrev_b32 v12, 5, v1")
    a("v_bfe_u32 v13, v1, 2, 2")
    a("v_xor_b32 v13, v13, v12")
    a("v_lshlrev_b32 v13, 4, v13")
    a("v_lshl_add_u32 v13, v11, 6, v13")
    a("s_lshl_b32 s30, s32, 11")
    a("v_add_u32 v16, s30, v13")
    a("v_xor_b32 v17, 32, v16")
    a("v_bfe_u32 v13, v1, 2, 2")
    a("s_lshl_b32 s30, s33, 1")
    a("v_xor_b32 v14, s30, v13")
    a("v_lshlrev_b32 v14, 6, v14")
    a("v_lshl_add_u32 v14, v13, 8, v14")
    a("v_lshl_add_u32 v14, v12, 11, v14")
    a("v_bfe_u32 v15, v1, 4, 1")
    a("v_lshl_add_u32 v14, v15, 5, v14")
    a("v_lshl_add_u32 v18, v8, 3, v14")
    a("v_xor_b32 v19, 64, v18")
    for k in range(4):
        a("v_add_u32 v%d, 0x10000, v%d" % (20 + k, 16 + k))
    a("s_lshl_b32 s30, s33, 8")
    a("v_lshlrev_b32 v24, 4, v12")
    a("v_add_u32 v24, s30, v24")
    a("v_add_u32 v24, %d, v24" % DNN_TAB)
    a("s_waitcnt vmcnt(%d)" % DEPTH)
    for t in range(DEPTH): dma_x(t)
    a("v_lshlrev_b32 v4, 2, v0")
    a("v_add_u32 v4, %d, v4" % DNN_TAB)
    a("v_cmp_gt_u32 vcc, 128, v0")
    a("v_cndmask_b32 v58, v59, v58, vcc")
    a("v_cmp_gt_u32 vcc, 256, v0")
    a("s_and_saveexec_b64 s[6:7], vcc")
    a("ds_write_b32 v4, v58")
    a("s_mov_b64 exec, s[6:7]")
    a("s_waitcnt lgkmcnt(0)")
    ACC = 64
    XF = 96
    WF = 112
    def mfmas(s):
        b = s % 2
        for st in range(2):
            for tl in range(2):
                a("v_mfma_f32_32x32x16_bf16 %s, %s, %s, %s" % (vr(ACC + 16 * tl, 16), vr(WF + 16 * b + 8 * tl + 4 * st, 4), vr(XF + 8 * b + 4 * st, 4), vr(ACC + 16 * tl, 16)))
    for s in range(26):
        n = (DEPTH - 1 - s) + 2 * min(s, 26 - DEPTH) if s < DEPTH else 2 * (min(s + DEPTH - 1, 25) - s)
        a("s_waitcnt vmcnt(%d)" % n)
        a("s_barrier")
        if s + DEPTH < 26:
            dma_x(s + DEPTH); dma_w(s + DEPTH)
        if s == 0:
            for tl in range(2):
                for g in range(4):
                    a("ds_read_b128 %s, v24 offset:%d" % (vr(ACC + 16 * tl + 4 * g, 4), 128 * tl + 32 * g))
        slot = s % RING
        hi = 4 if slot >= 4 else 0
        so = (slot % 4) * 16384
        b = s % 2
        for st in range(2):
            a("ds_read_b128 %s, v%d offset:%d" % (vr(XF + 8 * b + 4 * st, 4), 16 + hi + st, so))
            for tl in range(2):
                for t in range(2):
                    a("ds_read_b64_tr_b16 %s, v%d offset:%d" % (vr(WF + 16 * b + 8 * tl + 4 * st + 2 * t, 2), 18 + hi + tl, so + 8192 + st * 4096 + t * 1024))
        if s > 0: mfmas(s - 1)
        a("s_waitcnt lgkmcnt(0)")
    mfmas(25)
    W2 = 96
    a("v_mov_b32 v25, %s" % fbits(-2.302208198144325))
    a("s_mov_b32 s30, %s" % fbits(-0.10294323958002470))
    for tl in range(2):
        for g in range(4):
            a("ds_read_b128 %s, v24 offset:%d" % (vr(144 + 16 * tl + 4 * g, 4), 512 + 128 * tl + 32 * g))
    a("s_waitcnt lgkmcnt(0)")
    G = 4
    for k0 in range(0, 32, G):
        ks = range(k0, k0 + G)
        T = lambda k: 32 + (k % G)
        for k in ks: a("v_mul_f32 v%d, v%d, v%d" % (T(k), ACC + k, ACC + k))
        for k in ks: a("v_fma_f32 v%d, v%d, s30, v25" % (T(k), T(k)))
        for k in ks: a("v_mul_f32 v%d, v%d, v%d" % (T(k), T(k), ACC + k))
        for k in ks: a("v_exp_f32 v%d, v%d" % (T(k), T(k)))
        for k in ks: a("v_mul_f32 v%d, v%d, v%d" % (ACC + k, ACC + k, 144 + k))
        for k in ks: a("v_add_f32 v%d, 1.0, v%d" % (T(k), T(k)))
        for k in ks: a("v_rcp_f32 v%d, v%d" % (T(k), T(k)))
        for k in ks:
            if k < 2: a("v_mul_f32 v%d, v%d, v%d" % (26 + k, ACC + k, T(k)))
            else: a("v_fmac_f32 v%d, v%d, v%d" % (26 + (k & 1), ACC + k, T(k)))
    a("v_add_f32 v26, v26, v27")
    a("v_mov_b32 v27, v26")
    a("v_permlane32_swap_b32 v26, v27")
    a("v_add_f32 v26, v26, v27")
    srd(a, 16, "ws", size=32 * 14 * 512, off=WS_PART)
    a("s_mul_i32 s28, s4, 7")
    a("s_add_u32 s28, s28, s5")
    a("s_lshl_b32 s28, s28, 1")
    a("s_add_u32 s28, s28, s33")
    a("s_lshl_b32 s28, s28, 9")
    a("s_lshl_b32 s29, s32, 7")
    a("s_add_u32 s28, s28, s29")
    a("v_lshlrev_b32 v4, 2, v1")
    a("v_cmp_gt_u32 vcc, 32, v1")
    a("s_and_saveexec_b64 s[6:7], vcc")
    a("buffer_store_dword v26, v4, s[16:19], s28 offen%s" % ST)
    a("s_mov_b64 exec, s[6:7]")

CIN_WTAB = 152 * 1024
CIN_LDS = CIN_WTAB + 512
def cin(a):
    srd(a, 8, "table"); srd(a, 12, "ws", size=NFRAG * FRAG); srd(a, 16, "wout")
    a("s_lshl_b32 s6, s4, 7")
    a("s_lshl_b32 s7, s5, 4")
    a("s_add_u32 s6, s6, s7")
    a("s_lshl_b32 s7, s3, 1")
    a("s_add_u32 s6, s6, s7")
    a("s_mul_i32 s7, s6, 104")
    a("s_add_u32 s64, s64, s7")
    a("s_addc_u32 s65, s65, 0")
    a("s_load_dwordx4 s[28:31], s[64:65], 0")
    a("s_load_dwordx16 s[32:47], s[64:65], 16")
    a("s_load_dwordx16 s[48:63], s[64:65], 80")
    a("s_load_dwordx8 s[88:95], s[64:65], 144")
    a("s_load_dwordx4 s[96:99], s[64:65], 176")
    a("s_load_dwordx2 s[100:101], s[64:65], 192")
    a("s_load_dwordx2 s[86:87], s[64:65], 200")
    a("s_load_dwordx8 s[20:27], s[84:85], 0x%x" % WS_EXP)
    idx_s = list(range(28, 64)) + list(range(88, 102)) + [86, 87]
    X = [16, 32]; Y = [48, 64]; Fr = [80, 88]; ACC = [96, 112]; ACG = [128, 144]; U = [160, 168]
    Z = [176, 184]; AF = 192; WC = 208; XFL = [96, 128]
    ACL = [224, 240]
    vE = [4, 5]; vNX = [6, 7]; vS = [8, 9]; vD = 10; vA = 11; vW = 12; T0 = 13; T1 = 14; T2 = 15
    TS = [(29, 30, 31), (45, 46, 47)]
    a("v_and_b32 v2, 3, v1")
    a("v_bfe_u32 v3, v1, 3, 2")
    a("v_lshl_add_u32 v2, v3, 2, v2")
    a("v_min_u32 v2, 12, v2")
    a("v_bfe_u32 v3, v1, 2, 1")
    a("v_mad_u32_u24 v2, v3, 13, v2")
    a("v_lshrrev_b32 v3, 5, v1")
    a("v_mad_u32_u24 v2, v3, 26, v2")
    a("v_lshlrev_b32 v%d, 4, v2" % vD)
    a("s_lshl_b32 s66, s3, 10")
    a("s_mul_i32 s67, s3, %d" % FRAG)
    def dma(k, lds_k):
        a("s_add_u32 m0, s66, %d" % (8192 * lds_k))
        a("s_add_u32 s7, s67, %d" % (8 * FRAG * k))
        a("buffer_load_dwordx4 v%d, s[12:15], s7 offen lds" % vD)
    a("v_and_b32 v13, 15, v0")
    a("v_lshrrev_b32 v14, 4, v0")
    a("v_mad_u32_u24 v14, v14, 13, v13")
    a("v_lshlrev_b32 v14, 1, v14")
    a("v_cmp_gt_u32 vcc, 13, v13")
    a("v_mov_b32 v15, 0x7ffffff0")
    a("v_cndmask_b32 v14, v15, v14, vcc")
    a("v_mov_b32 v%d, 0" % WC)
    a("buffer_load_short_d16_hi v%d, v14, s[16:19], 0 offen" % WC)
    for k in range(3): dma(k, k)
    a("v_and_b32 v13, 31, v1")
    a("v_lshlrev_b32 v13, 1, v13")
    for s in range(2):
        for j in range(26): a("v_mov_b32 v%d, 0" % (XFL[s] + j))
    a("s_waitcnt lgkmcnt(0)")
    for s in range(2):
        for j in range(26):
            si = idx_s[26 * s + j]
            a("s_lshl_b32 s%d, s%d, 6" % (si, si))
            a("buffer_load_short_d16_hi v%d, v13, s[8:11], s%d offen" % (XFL[s] + j, si))
    a("s_waitcnt vmcnt(55)")
    a("v_lshlrev_b32 v14, 2, v0")
    a("v_add_u32 v14, %d, v14" % CIN_WTAB)
    a("v_cmp_gt_u32 vcc, 128, v0")
    a("s_and_saveexec_b64 s[68:69], vcc")
    a("ds_write_b32 v14, v%d" % WC)
    a("s_mov_b64 exec, s[68:69]")
    for k in range(3, 19): dma(k, k)
    a("v_lshlrev_b32 v%d, 4, v1" % vA)
    a("v_lshlrev_b32 v%d, 6, v3" % vW)
    a("v_add_u32 v%d, %d, v%d" % (vW, CIN_WTAB, vW))
    a("v_lshlrev_b32 v2, 4, v3")
    a("v_cmp_ne_u32 s[70:71], 0, v3")
    a("s_mov_b32 s72, 0x07060302")
    for k in range(5):
        a("s_sub_i32 s%d, 0, s%d" % (20 + k, 20 + k))
    a("s_waitcnt vmcnt(16)")
    for s in range(2):
        xf = XFL[s]; m, t, u = TS[s]
        a("v_max3_f32 v%d, |v%d|, |v%d|, |v%d|" % (m, xf, xf + 1, xf + 2))
        for j in range(3, 25, 2):
            a("v_max3_f32 v%d, v%d, |v%d|, |v%d|" % (m, m, xf + j, xf + j + 1))
        a("v_max_f32 v%d, v%d, |v%d|" % (m, m, xf + 25))
        a("v_frexp_exp_i32_f32 v%d, v%d" % (m, m))
        a("v_sub_u32 v%d, 7, v%d" % (m, m))
        a("v_min_i32 v%d, 126, v%d" % (m, m))
        a("v_ldexp_f32 v%d, 1.0, v%d" % (t, m))
        a("v_sub_u32 v%d, 0, v%d" % (vNX[s], m))
        a("v_lshl_add_u32 v%d, v%d, 1, s20" % (vE[s], vNX[s]))
        a("v_mov_b32 v%d, 0" % vS[s])
        for p in range(13): a("v_fma_mixlo_f16 v%d, v%d, v%d, 0" % (X[s] + p, xf + 2 * p, t))
        for p in range(13): a("v_fma_mixhi_f16 v%d, v%d, v%d, 0" % (X[s] + p, xf + 2 * p + 1, t))
        for p in range(13): a("v_perm_b32 v%d, v%d, v%d, s72" % (xf + 2 * p, xf + 2 * p + 1, xf + 2 * p))
        for p in range(13): a("v_alignbit_b32 v%d, v%d, v%d, v2" % (Y[s] + p, X[s] + p, X[s] + p))
        for p in range(6): a("v_cndmask_b32 v%d, v%d, v%d, s[70:71]" % (Fr[s] + p, xf + 2 * p, xf + 2 * (p + 7)))
        a("v_cndmask_b32 v%d, v%d, 0, s[70:71]" % (Fr[s] + 6, xf + 12))
        a("v_mov_b32 v%d, 0" % (Fr[s] + 7))
    a("s_waitcnt lgkmcnt(0)")
    a("s_barrier")

    def zq(s, r, dst):
        if r >= 91: a("v_mov_b32 v%d, 0" % dst); return
        d, sa = divmod(r, 13); tb = (sa + d) % 13
        a("v_pk_mul_f16 v%d, v%d, v%d" % (dst, X[s] + sa, Y[s] + tb))
    def zl(s, r, dst):
        if r >= 169: a("v_mov_b32 v%d, 0" % dst); return
        il, t = divmod(r, 13)
        a("v_pk_mul_f16 v%d, v%d, v%d op_sel:[%d,0] op_sel_hi:[%d,1]" % (dst, U[s] + il // 2, X[s] + t, il & 1, il & 1))
    def rd(k, base):
        a("ds_read_b128 %s, v%d offset:%d" % (vr(AF + 4 * (k % 4), 4), vA, base + 1024 * k))
    def pre(base):
        for k in range(3): rd(k, base)
    def body(nst, zf, acc, base, extra_lgkm=0):
        for s in range(2):
            for q in range(4): zf(s, q, Z[s] + q)
        for st in range(nst):
            a("s_waitcnt lgkmcnt(%d)" % min(2, nst - 1 - st))
            for s in range(2):
                a("v_mfma_f32_32x32x16_f16 %s, %s, %s, %s" % (vr(acc[s], 16), vr(AF + 4 * (st % 4), 4), vr(Z[s] + 4 * (st % 2), 4), "0" if st == 0 else vr(acc[s], 16)))
                if s == 1 and st + 3 < nst: rd(st + 3, base)
                if st + 1 < nst:
                    for q in range(4): zf(s, 4 * (st + 1) + q, Z[s] + 4 * ((st + 1) % 2) + q)
    def wload(off):
        for g in range(4):
            a("ds_read_b128 %s, v%d offset:%d" % (vr(WC + 4 * g, 4), vW, off + 16 * g))
    def trans(sneg):
        for s in range(2):
            ac = ACC[s]; m, t, u = TS[s]
            a("v_max3_f32 v%d, |v%d|, |v%d|, |v%d|" % (m, ac, ac + 1, ac + 2))
            for j in range(3, 13, 2):
                a("v_max3_f32 v%d, v%d, |v%d|, |v%d|" % (m, m, ac + j, ac + j + 1))
            a("v_mov_b32 v%d, v%d" % (t, m))
            a("v_mul_f32 v%d, v%d, v%d" % (u, WC, ac))
            a("v_fmac_f32 v%d, v%d, v%d" % (u, WC + 1, ac + 1))
            a("v_permlane32_swap_b32 v%d, v%d" % (m, t))
            a("v_max_f32 v%d, v%d, v%d" % (m, m, t))
            a("v_frexp_exp_i32_f32 v%d, v%d" % (m, m))
            a("v_sub_u32 v%d, 8, v%d" % (m, m))
            a("v_min_i32 v%d, 126, v%d" % (m, m))
            a("v_ldexp_f32 v%d, 1.0, v%d" % (t, m))
            for p in range(7): a("v_fma_mixlo_f16 v%d, v%d, v%d, 0" % (U[s] + p, ac + 2 * p, t))
            for p in range(6): a("v_fma_mixhi_f16 v%d, v%d, v%d, 0" % (U[s] + p, ac + 2 * p + 1, t))
            for j in range(2, 13): a("v_fmac_f32 v%d, v%d, v%d" % (u, WC + j, ac + j))
            a("v_ldexp_f32 v%d, v%d, v%d" % (u, u, vE[s]))
            a("v_add_f32 v%d, v%d, v%d" % (vS[s], vS[s], u))
            a("v_sub_u32 v%d, v%d, v%d" % (vE[s], vE[s], m))
            a("v_add3_u32 v%d, v%d, v%d, s%d" % (vE[s], vE[s], vNX[s], sneg))
    wload(0)
    pre(0)
    body(23, zq, ACC, 0)
    a("s_waitcnt vmcnt(0)")
    a("s_barrier")
    a("v_add_u32 v%d, %d, v%d" % (vA, 23 * 1024, vA))
    a("s_mov_b32 s73, 0")
    a.label("L_layer")
    pre(0)
    trans(21)
    a("v_add_u32 v%d, 128, v%d" % (vW, vW))
    a("s_waitcnt lgkmcnt(0)")
    wload(0)
    a("s_waitcnt lgkmcnt(0)")
    body(43, zl, ACC, 0)
    a("v_add_u32 v%d, %d, v%d" % (vA, 43 * 1024, vA))
    a("s_mov_b32 s21, s22")
    a("s_mov_b32 s22, s23")
    a("s_cmp_lg_u32 s73, 0")
    a("s_cbranch_scc1 L_noq1")
    a("s_barrier")
    for k in range(4): dma(19 + k, k)
    a.label("L_noq1")
    a("s_add_u32 s73, s73, 1")
    a("s_cmp_lt_u32 s73, 3")
    a("s_nop 7")
    a("s_cbranch_scc1 L_layer")
    srd(a, 16, "ws", size=32 * 14 * 512, off=WS_PART)
    srd(a, 8, "bout")
    a("s_waitcnt vmcnt(0)")
    a("s_barrier")
    a("s_mul_i32 s28, s4, %d" % (14 * 512))
    a("s_and_b32 s29, s6, 127")
    a("s_lshl_b32 s29, s29, 2")
    a("s_add_u32 s28, s28, s29")
    a("v_lshlrev_b32 v13, 9, v1")
    a("v_cmp_gt_u32 vcc, 14, v1")
    a("v_mov_b32 v15, 0x7ffffff0")
    a("v_cndmask_b32 v13, v15, v13, vcc")
    a("buffer_load_dwordx2 v[2:3], v13, s[16:19], s28 offen")
    a("v_subrev_u32 v14, 14, v1")
    a("v_lshlrev_b32 v14, 4, v14")
    a("v_mov_b32 v15, 0")
    a("buffer_load_short_d16_hi v15, v14, s[8:11], 0 offen")
    a("v_lshlrev_b32 v%d, 4, v1" % vA)
    rd(23, 0); rd(24, 0)
    a("s_waitcnt lgkmcnt(0)")
    for s in range(2):
        a("v_mfma_f32_32x32x16_bf16 %s, %s, %s, %s" % (vr(ACL[s], 16), vr(AF + 4 * (23 % 4), 4), vr(Fr[s], 4), vr(WC, 16)))
    for s in range(2):
        a("v_mfma_f32_32x32x16_bf16 %s, %s, %s, %s" % (vr(ACL[s], 16), vr(AF + 4 * (24 % 4), 4), vr(Fr[s] + 4, 4), vr(ACL[s], 16)))
    pre(0)
    body(23, zq, ACG, 0)
    for s in range(2):
        m, t, u = TS[s]
        a("v_lshl_add_u32 v%d, v%d, 1, s24" % (m, vNX[s]))
    for s in range(2):
        m, t, u = TS[s]
        for j in range(13): a("v_ldexp_f32 v%d, v%d, v%d" % (ACG[s] + j, ACG[s] + j, m))
        for j in range(13): a("v_add_f32 v%d, v%d, v%d" % (ACG[s] + j, ACG[s] + j, ACL[s] + j))
        a("v_mul_f32 v%d, v%d, v%d" % (u, ACG[s], ACC[s]))
        for j in range(1, 13): a("v_fmac_f32 v%d, v%d, v%d" % (u, ACG[s] + j, ACC[s] + j))
        a("v_ldexp_f32 v%d, v%d, v%d" % (u, u, vE[s]))
        a("v_add_f32 v%d, v%d, v%d" % (vS[s], vS[s], u))
    a("s_waitcnt vmcnt(0)")
    for s in range(2):
        a("v_add3_f32 v0, v0, v0, v0") if False else None
        a("v_add_f32 v%d, v%d, v%d" % (vS[s], vS[s], 2 + s))
        a("v_add_f32 v%d, v%d, v15" % (vS[s], vS[s]))
    for mod in ("row_shr:1 row_mask:0xf bank_mask:0xf bound_ctrl:0", "row_shr:2 row_mask:0xf bank_mask:0xf bound_ctrl:0", "row_shr:4 row_mask:0xf bank_mask:0xf bound_ctrl:0", "row_shr:8 row_mask:0xf bank_mask:0xf bound_ctrl:0", "row_bcast:15 row_mask:0xa bank_mask:0xf", "row_bcast:31 row_mask:0xc bank_mask:0xf"):
        for s in range(2):
            a("v_add_f32_dpp v%d, v%d, v%d %s" % (vS[s], vS[s], vS[s], mod))
    srd(a, 16, "out")
    a("v_cvt_pk_bf16_f32 v2, v%d, v%d" % (vS[0], vS[1]))
    a("s_lshl_b32 s28, s6, 1")
    a("v_mov_b32 v3, s28")
    a("v_cmp_eq_u32 vcc, 63, v1")
    a("s_and_saveexec_b64 s[68:69], vcc")
    a("buffer_store_dword v2, v3, s[16:19], 0 offen")

def kernel_begin(a, name):
    a.raw(".globl %s\n.p2align 8\n.type %s,@function" % (name, name))
    a.label(name); a.reset_hist()
def descriptor(name, nv):
    return """.amdhsa_kernel %s
  .amdhsa_next_free_vgpr %d
  .amdhsa_next_free_sgpr 102
  .amdhsa_accum_offset %d
  .amdhsa_group_segment_fixed_size 0
  .amdhsa_kernarg_size 88
  .amdhsa_user_sgpr_count 2
  .amdhsa_user_sgpr_kernarg_segment_ptr 1
  .amdhsa_system_sgpr_workgroup_id_x 1
.end_amdhsa_kernel
""" % (name, nv, nv)

def main(out):
    a = Asm()
    a.raw("; @launch kernel=dnnprep_kernel grid=(256,1,1) block=(512,1,1) lds=%d" % (DNN_TAB + 1024))
    a.raw("; @launch kernel=%s_kernel grid=(256,1,1) block=(512,1,1) lds=%d" % (NAME, CIN_LDS))
    a.raw('.amdgcn_target "amdgcn-amd-amdhsa--gfx950"\n.text')
    kernel_begin(a, "dnnprep_kernel")
    prologue(a, "k1")
    a("s_cmp_eq_u32 s5, 7")
    a("s_cbranch_scc1 L_prep")
    dnn(a)
    a("s_endpgm")
    a.label("L_prep"); a.reset_hist()
    prep(a)
    a.label("L_end_k1")
    a("s_endpgm")
    kernel_begin(a, NAME + "_kernel")
    prologue(a, "k2")
    cin(a)
    a.label("L_end_k2")
    a("s_endpgm")
    a.raw('.section .rodata,"a"\n.p2align 6')
    a.raw(descriptor("dnnprep_kernel", 256))
    a.raw(".p2align 6")
    a.raw(descriptor(NAME + "_kernel", 256))
    open(out, "w").write(a.text())
    print("instrs", a.ninstr, "nops", a.nops, file=sys.stderr)

if __name__ == "__main__":
    main(sys.argv[1] if len(sys.argv) > 1 else "cdna_kernels/%s.s" % NAME)
```

```python
import sys, struct
from asmlib import Asm, vr, sr
from model2 import FRAG, HDR, HDR2, Q0_F, L_F, Q1_F, LIN_F, NFRAG, P2_F, WS_PART

NAME = "standalone__deep_cross_xdeepfm__recsys"
def fbits(x): return "0x%08x" % struct.unpack("<I", struct.pack("<f", x))[0]
SZ = dict(idx=4096 * 26 * 4, table=100000 * 64, wcin=6 * 35152, wout=312, w1=832 * 832 * 2, b1=1664, w2=1664, bout=2, out=8192, dbg=256)
KOFF = dict(idx=0, table=8, wcin=16, wout=24, w1=32, b1=40, w2=48, bout=56, out=64, dbg=72, ws=80)
def kp(name): return 64 + KOFF[name] // 4
IMG = HDR2 + 16
P2_OFF = HDR + P2_F * FRAG
P1_OFF = HDR + L_F * FRAG - 16
P1_UNITS = 73
L_Q0 = 65536
L_P1 = L_Q0 + 23 * FRAG
L_L1 = L_P1 + 16
L_L2 = L_L1 + 43 * FRAG
L_XS = L_P1 + 36 * 1024
L_WTAB = L_P1 + P1_UNITS * 1024
L_DTAB = L_WTAB + 512
L_CNT = L_DTAB + 1024
LDS_BYTES = L_CNT + 64 + 32
assert LDS_BYTES <= 163840 and L_L2 + 43 * FRAG <= L_WTAB
S1, S2, S3, C2, C4, CD, CP, C5, C6, CX, C0 = 0, 4, 8, 12, 16, 20, 24, 28, 32, 36, 40
MX = 64
NPREP = 29
BIG = "0x7ffffff0"
SC = " sc1"
SPIN = 1 << 20
DIAG = False
OPT = {}
_st = [0]
_lab = [0]
def newlab(p):
    _lab[0] += 1
    return "L_%s%d" % (p, _lab[0])

def srd(a, d, name, size=None, off=0):
    p = kp(name)
    if off:
        a("s_add_u32 s%d, s%d, 0x%x" % (d, p, off))
        a("s_addc_u32 s%d, s%d, 0" % (d + 1, p + 1))
    else:
        a("s_mov_b32 s%d, s%d" % (d, p))
        a("s_mov_b32 s%d, s%d" % (d + 1, p + 1))
    a("s_mov_b32 s%d, 0x%x" % (d + 2, size if size is not None else SZ[name]))
    a("s_mov_b32 s%d, 0x20000" % (d + 3))

def stamp(a, real=False):
    if not DIAG: return
    a("s_memrealtime s[90:91]" if real else "s_memtime s[90:91]")
    a("s_waitcnt lgkmcnt(0)")
    a("v_writelane_b32 v167, s90, %d" % _st[0])
    _st[0] += 1
def stamp_loop(a, sreg, mul, k, total):
    if not DIAG: return
    a("s_memtime s[90:91]")
    a("s_mul_i32 s92, s%d, %d" % (sreg, mul))
    a("s_add_u32 m0, s92, %d" % (_st[0] + k))
    a("s_waitcnt lgkmcnt(0)")
    a("v_writelane_b32 v167, s90, m0")
    _st[0] += total
def stamp_flush(a):
    if not DIAG: return
    stamp(a); stamp(a, True)
    a("s_mov_b64 exec, -1")
    srd(a, 16, "ws", size=0x80000, off=0x80000)
    a("s_mul_i32 s90, s2, 12")
    a("s_add_u32 s90, s90, s3")
    a("s_lshl_b32 s90, s90, 7")
    a("v_lshlrev_b32 v166, 2, v1")
    a("v_cmp_gt_u32 vcc, 32, v1")
    a("s_and_saveexec_b64 s[92:93], vcc")
    a("buffer_store_dword v167, v166, s[16:19], s90 offen")

def arrive(a, vC, vOne, cnt):
    a("s_mov_b64 exec, 1")
    a("ds_add_u32 v%d, v%d offset:%d" % (vC, vOne, cnt))
    a("s_mov_b64 exec, -1")
def wait_lds(a, vC, vT, cnt, target, sleep=1):
    l = newlab("w"); d = newlab("d")
    a("s_mov_b32 s60, %d" % SPIN)
    a.label(l)
    a("ds_read_b32 v%d, v%d offset:%d" % (vT, vC, cnt))
    a("s_waitcnt lgkmcnt(0)")
    a("v_readfirstlane_b32 s61, v%d" % vT)
    a("s_cmp_ge_u32 s61, %s" % target)
    a("s_cbranch_scc1 %s" % d)
    a("s_sub_u32 s60, s60, 1")
    a("s_cbranch_scc1 %s" % d)
    if sleep: a("s_sleep %d" % sleep)
    a("s_branch %s" % l)
    a.label(d)

def wave_max_u32(a, v):
    for sh in (1, 2, 4, 8):
        a("v_max_u32_dpp %s, %s, %s row_shr:%d row_mask:0xf bank_mask:0xf" % (vr(v), vr(v), vr(v), sh))
    a("v_max_u32_dpp %s, %s, %s row_bcast:15 row_mask:0xa bank_mask:0xf" % (vr(v), vr(v), vr(v)))
    a("v_max_u32_dpp %s, %s, %s row_bcast:31 row_mask:0xc bank_mask:0xf" % (vr(v), vr(v), vr(v)))
def max_publish(a, v, t, vC, sw, off):
    wave_max_u32(a, v)
    a("v_readlane_b32 s6, %s, 63" % vr(v))
    a("s_lshl_b32 s7, s%d, 2" % sw)
    a("v_add_u32 %s, s7, v%d" % (vr(t), vC))
    a("v_mov_b32 %s, s6" % vr(v))
    a("ds_write_b32 %s, %s offset:%d" % (vr(t), vr(v), off))
def max_fold(a, dst_s, q, n):
    a("v_max3_u32 %s, %s, %s, %s" % (vr(q), vr(q), vr(q + 1), vr(q + 2)))
    if n == 8:
        a("v_max3_u32 %s, %s, %s, %s" % (vr(q + 3), vr(q + 3), vr(q + 4), vr(q + 5)))
        a("v_max3_u32 %s, %s, %s, %s" % (vr(q), vr(q), vr(q + 6), vr(q + 7)))
    a("v_max_u32 %s, %s, %s" % (vr(q), vr(q), vr(q + 3)))
    a("v_readfirstlane_b32 s%d, %s" % (dst_s, vr(q)))
def w_scale(a, se, ssc):
    a("s_lshr_b32 s%d, s%d, 7" % (se, se))
    a("s_sub_i32 s%d, 141, s%d" % (se, se))
    a("s_min_i32 s%d, s%d, 126" % (se, se))
    a("s_add_i32 s%d, s%d, 127" % (ssc, se))
    a("s_lshl_b32 s%d, s%d, 23" % (ssc, ssc))
def w_convert(a, regs, ssc, t0):
    for k0 in range(0, len(regs), 4):
        g = regs[k0:k0 + 4]
        for k, r in enumerate(g): a("v_lshlrev_b32 v%d, 16, v%d" % (t0 + k, r))
        for k, r in enumerate(g): a("v_and_b32 v%d, 0xffff0000, v%d" % (r, r))
        for k, r in enumerate(g): a("v_mul_f32 v%d, %s, v%d" % (t0 + k, ssc, t0 + k))
        for k, r in enumerate(g): a("v_mul_f32 v%d, %s, v%d" % (r, ssc, r))
        for k, r in enumerate(g): a("v_cvt_pk_f16_f32 v%d, v%d, v%d" % (r, t0 + k, r))
def pk_absmax(a, acc, regs, tmp):
    for k, r in enumerate(regs):
        if k == 0:
            a("v_and_b32 %s, 0x7fff7fff, %s" % (vr(acc), vr(r)))
        else:
            a("v_and_b32 %s, 0x7fff7fff, %s" % (vr(tmp), vr(r)))
            a("v_pk_max_u16 %s, %s, %s" % (vr(acc), vr(acc), vr(tmp)))
    a("v_lshrrev_b32 %s, 16, %s" % (vr(tmp), vr(acc)))
    a("v_and_b32 %s, 0xffff, %s" % (vr(acc), vr(acc)))
    a("v_max_u32 %s, %s, %s" % (vr(acc), vr(acc), vr(tmp)))

def piece(a, P, s, kh, h, t, t2, zmask):
    a("v_mul_u32_u24 %s, 1214, %s" % (vr(s), vr(P)))
    a("v_lshrrev_b32 %s, 16, %s" % (vr(s), vr(s)))
    a("v_mul_u32_u24 %s, 54, %s" % (vr(t), vr(s)))
    a("v_sub_u32 %s, %s, %s" % (vr(h), vr(P), vr(t)))
    a("v_mul_u32_u24 %s, 38, %s" % (vr(kh), vr(h)))
    a("v_lshrrev_b32 %s, 10, %s" % (vr(kh), vr(kh)))
    a("v_mul_u32_u24 %s, 27, %s" % (vr(t), vr(kh)))
    a("v_sub_u32 %s, %s, %s" % (vr(h), vr(h), vr(t)))
    a("v_cmp_ne_u32 %s, 13, %s" % (zmask, vr(h)))
    a("v_add_u32 %s, 2, %s" % (vr(t), vr(h)))
    a("v_lshrrev_b32 %s, 4, %s" % (vr(t), vr(t)))
    a("v_mul_u32_u24 %s, 14, %s" % (vr(t2), vr(t)))
    a("v_sub_u32 %s, %s, %s" % (vr(h), vr(h), vr(t2)))
    a("v_min_u32 %s, 12, %s" % (vr(h), vr(h)))
    a("v_lshrrev_b32 %s, 1, %s" % (vr(t2), vr(h)))
    a("v_xor_b32 %s, %s, %s" % (vr(t2), vr(t2), vr(h)))
    a("v_bfe_u32 %s, %s, 2, 1" % (vr(t2), vr(t2)))
    a("v_xor_b32 %s, %s, %s" % (vr(t), vr(t), vr(t2)))
    a("v_mad_u32_u24 %s, %s, 13, %s" % (vr(h), vr(t), vr(h)))

def feat_idx(a, r, kh, sa, tb0, tb1, dl, t):
    a("v_mul_u32_u24 %s, 79, %s" % (vr(dl), vr(r)))
    a("v_lshrrev_b32 %s, 10, %s" % (vr(dl), vr(dl)))
    a("v_mul_u32_u24 %s, 13, %s" % (vr(t), vr(dl)))
    a("v_sub_u32 %s, %s, %s" % (vr(sa), vr(r), vr(t)))
    a("v_add_u32 %s, %s, %s" % (vr(tb0), vr(sa), vr(dl)))
    a("v_subrev_u32 %s, 13, %s" % (vr(t), vr(tb0)))
    a("v_min_u32 %s, %s, %s" % (vr(tb0), vr(tb0), vr(t)))
    a("v_lshlrev_b32 %s, 1, %s" % (vr(sa), vr(sa)))
    a("v_lshl_add_u32 %s, %s, 1, %s" % (vr(tb0), vr(tb0), vr(kh)))
    a("v_xor_b32 %s, 1, %s" % (vr(tb1), vr(tb0)))
    a("v_min_u32 %s, 1, %s" % (vr(dl), vr(dl)))
    a("v_xor_b32 %s, 1, %s" % (vr(dl), vr(dl)))

def signal(a, s_cnt_off, inc, shift, s_last, s_flag_off, t0, t1, srdreg=16):
    lb = newlab("sg")
    srd(a, srdreg, "dbg")
    a("v_mov_b32 %s, 0x%x" % (vr(t0), inc))
    a("v_mov_b32 %s, s%d" % (vr(t1), s_cnt_off))
    a("s_mov_b64 exec, 1")
    a("buffer_atomic_add %s, %s, s[%d:%d], 0 offen sc0 sc1" % (vr(t0), vr(t1), srdreg, srdreg + 3))
    a("s_waitcnt vmcnt(0)")
    a("v_readfirstlane_b32 s61, %s" % vr(t0))
    a("s_bfe_u32 s61, s61, 0x%x" % (0x80000 | shift))
    a("s_cmp_lg_u32 s61, %s" % s_last)
    a("s_cbranch_scc1 %s" % lb)
    a("v_mov_b32 %s, 1" % vr(t0))
    a("v_mov_b32 %s, s%d" % (vr(t1), s_flag_off))
    a("buffer_store_byte %s, %s, s[%d:%d], 0 offen sc0 sc1" % (vr(t0), vr(t1), srdreg, srdreg + 3))
    a.label(lb)
    a("s_mov_b64 exec, -1")

def lane_piece(a, kh, h, vJ, t, t2, t3, zmask, vbig):
    piece(a, 1, t3, kh, h, t, t2, zmask)
    a("v_cmp_gt_u32 vcc, 54, v1")
    a("s_and_b64 %s, %s, vcc" % (zmask, zmask))
    a("v_mul_u32_u24 %s, 1352, %s" % (vr(h), vr(h)))
    a("v_mul_u32_u24 %s, 676, %s" % (vr(t), vr(kh)))
    a("v_add_u32 %s, %s, %s" % (vr(vJ), vr(h), vr(t)))
    a("v_cndmask_b32 %s, %s, %s, %s" % (vr(vJ), vr(vbig), vr(vJ), zmask))

def prep(a, vC, vOne):
    srd(a, 8, "wcin")
    srd(a, 12, "ws", size=IMG)
    a("v_mov_b32 v9, %s" % BIG)
    a("v_mov_b32 v8, 0")
    a("s_cmp_ge_u32 s62, %d" % NPREP)
    a("s_cbranch_scc1 L_prep_done")
    a("s_setprio 3")
    a("s_cmp_ge_u32 s62, 3")
    a("s_cbranch_scc1 L_prep_c")
    a("s_add_u32 s16, s62, 1")
    a("s_mul_i32 s16, s16, 35152")
    a("v_lshlrev_b32 v20, 4, v1")
    a("s_lshl_b32 s17, s3, 10")
    for k in range(9):
        a("s_add_u32 s18, s17, %d" % (4096 * k))
        a("s_add_u32 m0, s18, 1024")
        a("s_add_u32 s18, s18, s16")
        a("buffer_load_dwordx4 v20, s[8:11], s18 offen lds")
    lane_piece(a, 12, 13, 10, 14, 15, 11, "s[18:19]", 8)
    a("s_lshl_b32 s17, s3, 4")
    a("s_add_u32 s17, s17, 1024")
    a("v_add_u32 v10, s17, v10")
    a("s_waitcnt vmcnt(0)")
    arrive(a, vC, vOne, CD)
    wait_lds(a, vC, 2, CD, 4, sleep=0)
    D = 32
    for k in range(11):
        a("ds_read2_b32 %s, v10 offset0:%d offset1:%d" % (vr(D + 4 * k, 2), 16 * k, 16 * k + 1))
        a("ds_read2_b32 %s, v10 offset0:%d offset1:%d" % (vr(D + 4 * k + 2, 2), 16 * k + 2, 16 * k + 3))
    a("s_cmp_lt_u32 s3, 2")
    a("s_cselect_b32 s17, -1, 0")
    a("s_cmp_lt_u32 s3, 3")
    a("s_cselect_b32 s20, -1, 0")
    a("s_waitcnt lgkmcnt(0)")
    a("v_and_b32 v%d, s20, v%d" % (D + 40, D + 40))
    for k in (1, 2, 3):
        a("v_and_b32 v%d, s17, v%d" % (D + 40 + k, D + 40 + k))
    pk_absmax(a, 15, list(range(D, D + 44)), 14)
    max_publish(a, 15, 14, 8, 3, 0)
    a("s_waitcnt lgkmcnt(0)")
    arrive(a, vC, vOne, CD)
    wait_lds(a, vC, 2, CD, 8, sleep=0)
    a("ds_read_b128 v[16:19], v8")
    a("s_waitcnt lgkmcnt(0)")
    max_fold(a, 17, 16, 4)
    w_scale(a, 17, 20)
    a("v_mov_b32 v21, s20")
    a("v_cndmask_b32 v21, 0, v21, s[18:19]")
    a("v_cmp_gt_u32 vcc, 54, v1")
    a("v_cndmask_b32 v10, v9, v20, vcc")
    a("s_mul_i32 s19, s62, %d" % (43 * FRAG))
    a("s_mul_i32 s18, s3, %d" % FRAG)
    a("s_add_u32 s19, s19, s18")
    for k in range(11):
        w_convert(a, list(range(D + 4 * k, D + 4 * k + 4)), "v21", 16)
        a("s_add_u32 s20, s19, %d" % (HDR + L_F * FRAG + 4 * FRAG * k))
        if k == 10:
            a("s_cmp_lt_u32 s3, 3")
            a("s_cselect_b32 s20, s20, 0x40000000")
        a("buffer_store_dwordx4 %s, v10, s[12:15], s20 offen%s" % (vr(D + 4 * k, 4), SC))
    a("s_lshl_b32 s20, s62, 3")
    a("s_add_u32 s20, s20, %d" % P1_OFF)
    a("s_cmp_eq_u32 s62, 2")
    a("s_cselect_b32 s20, %d, s20" % (HDR2 + 8))
    a("v_mov_b32 v16, s17")
    a("v_mov_b32 v17, 0")
    a("v_mov_b32 v12, s20")
    a("s_mov_b64 exec, 1")
    a("buffer_store_dwordx2 v[16:17], v12, s[12:15], 0 offen%s" % SC)
    a("s_mov_b64 exec, -1")
    a("s_waitcnt vmcnt(0)")
    arrive(a, vC, vOne, CD)
    a("s_cmp_lg_u32 s3, 0")
    a("s_cbranch_scc1 L_prep_done")
    wait_lds(a, vC, 2, CD, 12, sleep=0)
    a("s_branch L_prep_sig")
    a.label("L_prep_c"); a.reset_hist()
    a("s_load_dwordx16 s[20:35], s[%d:%d], 208" % (kp("wout"), kp("wout") + 1))
    a("s_load_dwordx8 s[36:43], s[%d:%d], 272" % (kp("wout"), kp("wout") + 1))
    a("s_load_dwordx2 s[44:45], s[%d:%d], 304" % (kp("wout"), kp("wout") + 1))
    a("s_sub_u32 s16, s62, 3")
    a("v_lshlrev_b32 v10, 3, v0")
    a("v_cmp_gt_u32 vcc, 169, v0")
    a("v_cndmask_b32 v10, v9, v10, vcc")
    for hp in range(26):
        a("s_mov_b32 s17, %d" % (5 * 35152 + hp * 1352))
        a("buffer_load_dwordx2 %s, v10, s[8:11], s17 offen" % vr(32 + 2 * hp, 2))
    a("v_lshlrev_b32 v11, 4, v0")
    SCN = 84
    for it in range(9):
        a("s_mov_b32 s17, %d" % (4 * 35152 + 4096 * it))
        if it == 8:
            a("v_cmp_gt_u32 vcc, %d, v11" % (35152 - 32768))
            a("v_cndmask_b32 v11, v9, v11, vcc")
        a("buffer_load_dwordx4 %s, v11, s[8:11], s17 offen" % vr(SCN + 4 * it, 4))
    a("v_and_b32 v12, 31, v1")
    a("v_lshrrev_b32 v13, 5, v1")
    a("v_mul_u32_u24 v15, 1352, v13")
    a("v_lshl_add_u32 v15, v12, 1, v15")
    a("v_cmp_gt_u32 vcc, 26, v12")
    a("v_cndmask_b32 v15, v9, v15, vcc")
    a("s_mul_i32 s18, s16, 52")
    a("s_add_u32 s18, s18, %d" % (4 * 35152))
    PR, MR = 120, 136
    for st in range(13):
        a("v_mov_b32 v%d, 0" % (PR + st))
    for st in range(13):
        a("s_add_u32 s17, s18, %d" % (st * 2704))
        a("buffer_load_short_d16_hi v%d, v15, s[8:11], s17 offen" % (PR + st))
    a("v_lshlrev_b32 v21, 7, v13")
    a("v_lshl_add_u32 v21, v12, 2, v21")
    for hf in range(2):
        a("v_lshl_add_u32 v14, v0, 1, %d" % hf)
        a("v_mul_u32_u24 v16, 5042, v14")
        a("v_lshrrev_b32 v16, 16, v16")
        a("v_mul_u32_u24 v17, 13, v16")
        a("v_sub_u32 v17, v14, v17")
        a("v_lshlrev_b32 v%d, 7, v16" % (19 + hf))
        a("v_lshl_add_u32 v%d, v17, 3, v%d" % (19 + hf, 19 + hf))
    a("v_mov_b32 v30, 0")
    a("s_waitcnt lgkmcnt(0)")
    for h in range(26):
        sw = 20 + h // 2
        a(("s_and_b32 s17, s%d, 0xffff0000" % sw) if h & 1 else ("s_lshl_b32 s17, s%d, 16" % sw))
        a("v_writelane_b32 v30, s17, %d" % h)
    a("v_lshlrev_b32 v31, 7, v1")
    a("v_cmp_gt_u32 vcc, 26, v0")
    a("s_and_saveexec_b64 s[6:7], vcc")
    a("ds_write_b32 v31, v30 offset:%d" % (1024 + 104))
    a("s_mov_b64 exec, s[6:7]")
    a("v_and_b32 v26, 0x7fffffff, v30")
    wave_max_u32(a, 26)
    a("v_readlane_b32 s46, v26, 63")
    a("s_waitcnt vmcnt(22)")
    for hp in range(26):
        sw = 33 + hp // 2
        a(("s_and_b32 s17, s%d, 0xffff0000" % sw) if hp & 1 else ("s_lshl_b32 s17, s%d, 16" % sw))
        for d in range(2):
            a("v_lshlrev_b32 v%d, 16, v%d" % (14 + 2 * d, 32 + 2 * hp + d))
            a("v_and_b32 v%d, 0xffff0000, v%d" % (15 + 2 * d, 32 + 2 * hp + d))
        for e in range(4):
            a(("v_mul_f32 v%d, s17, v%d" if hp == 0 else "v_fmac_f32 v%d, s17, v%d") % (22 + e, 14 + e))
    a("v_cmp_gt_u32 vcc, 169, v0")
    a("s_and_saveexec_b64 s[6:7], vcc")
    a("ds_write_b64 v19, v[22:23] offset:1024")
    a("ds_write_b64 v20, v[24:25] offset:1024")
    a("s_mov_b64 exec, s[6:7]")
    a("v_max3_f32 v22, |v22|, |v23|, |v24|")
    a("v_max_f32 v22, v22, |v25|")
    max_publish(a, 22, 18, 8, 3, 0)
    a("s_waitcnt vmcnt(13)")
    pk_absmax(a, 22, list(range(SCN, SCN + 36)), 18)
    max_publish(a, 22, 18, 8, 3, 16)
    a("s_waitcnt vmcnt(0) lgkmcnt(0)")
    arrive(a, vC, vOne, CD)
    a("s_cmp_lg_u32 s3, 0")
    a("s_cbranch_scc1 L_prep_done")
    wait_lds(a, vC, 2, CD, 4)
    for st in range(13):
        a("ds_read_b32 v%d, v21 offset:%d" % (MR + st, 1024 + 256 * st))
    a("ds_read_b128 v[16:19], v8")
    a("ds_read_b128 v[24:27], v8 offset:16")
    a("s_waitcnt lgkmcnt(0)")
    max_fold(a, 17, 16, 4)
    max_fold(a, 18, 24, 4)
    a("s_lshr_b32 s17, s17, 23")
    a("s_lshr_b32 s18, s18, 7")
    a("s_lshr_b32 s46, s46, 23")
    a("s_add_u32 s17, s17, s18")
    a("s_sub_i32 s17, %d, s17" % (9 + 252))
    a("s_add_u32 s46, s46, s18")
    a("s_sub_i32 s46, %d, s46" % (10 + 252))
    for st in range(13):
        a("v_mfma_f32_32x32x2_f32 v[32:47], v%d, v%d, %s" % (PR + st, MR + st, "0" if st == 0 else "v[32:47]"))
        a("v_mfma_f32_32x32x2_f32 v[32:47], v%d, v%d, v[32:47]" % (MR + st, PR + st))
    a("v_lshrrev_b32 v11, 1, v1")
    a("v_and_b32 v12, 1, v1")
    a("v_cmp_lt_u32 s[18:19], 22, v11")
    a("v_mov_b32 v14, s46")
    for q in range(4):
        a("v_lshl_add_u32 v15, v11, 2, %d" % q)
        a("v_min_u32 v15, 90, v15")
        feat_idx(a, 15, 12, 16, 17, 18, 76 + q, 19)
        for b in range(2):
            if b: a("v_add_u32 v16, 1, v16")
            a("v_lshlrev_b32 v19, 7, v16")
            a("v_lshl_add_u32 v%d, v%d, 2, v19" % (60 + 2 * q + b, 17 + b))
        a("v_sub_u32 v%d, s17, v%d" % (76 + q, 76 + q))
        a("v_cndmask_b32 v%d, v%d, v14, s[18:19]" % (76 + q, 76 + q))
    a("v_subrev_u32 v15, 23, v11")
    a("v_lshlrev_b32 v15, 3, v15")
    a("v_mad_u32_u24 v15, v12, 14, v15")
    a("v_lshlrev_b32 v15, 7, v15")
    for e in range(8):
        a("v_add_u32 v16, %d, v15" % (128 * e + 104))
        a("v_and_b32 v16, 0xfff, v16")
        a("v_cndmask_b32 v%d, v%d, v16, s[18:19]" % (60 + e, 60 + e))
    a("s_cmp_ge_u32 s16, 13")
    a("s_cselect_b32 s20, 1, 0")
    a("s_mul_i32 s21, s20, 13")
    a("s_sub_u32 s21, s16, s21")
    a("s_lshr_b32 s22, s21, 1")
    a("s_xor_b32 s22, s22, s21")
    a("s_bfe_u32 s22, s22, 0x10002")
    a("s_xor_b32 s20, s20, s22")
    a("s_mul_i32 s20, s20, 14")
    a("s_add_u32 s21, s21, s20")
    a("s_lshl_b32 s21, s21, 4")
    a("s_add_u32 s21, s21, %d" % (HDR + Q1_F * FRAG))
    a("v_and_b32 v20, 31, v1")
    a("v_lshlrev_b32 v20, 2, v20")
    a("v_lshl_add_u32 v20, v13, 9, v20")
    for v in range(16):
        a("ds_write_b32 v20, v%d offset:%d" % (32 + v, 8192 + 128 * (8 * (v >> 2) + (v & 3))))
    a("s_waitcnt lgkmcnt(0)")
    for e in range(8):
        a("ds_read_b32 v%d, v%d offset:8192" % (48 + e, 60 + e))
    a("s_waitcnt lgkmcnt(0)")
    for e in range(8):
        a("v_ldexp_f32 v%d, v%d, v%d" % (48 + e, 48 + e, 76 + e // 2))
    for q in range(4):
        a("v_cvt_pk_f16_f32 v%d, v%d, v%d" % (32 + q, 48 + 2 * q, 49 + 2 * q))
    a("v_cmp_ne_u32 vcc, 22, v11")
    a("v_cndmask_b32 v35, 0, v35, vcc")
    a("v_cmp_ne_u32 vcc, 24, v11")
    a("v_cndmask_b32 v35, 0, v35, vcc")
    a("v_cmp_ne_u32 vcc, 49, v1")
    a("v_cndmask_b32 v34, 0, v34, vcc")
    a("v_mul_u32_u24 v10, 432, v1")
    a("v_cmp_gt_u32 vcc, 50, v1")
    a("v_cndmask_b32 v10, v9, v10, vcc")
    a("buffer_store_dwordx4 v[32:35], v10, s[12:15], s21 offen%s" % SC)
    a("s_cmp_lg_u32 s16, 0")
    a("s_cbranch_scc1 L_prep_sig0")
    for q in range(4): a("v_mov_b32 v%d, 0" % (36 + q))
    a("s_mov_b32 s21, %d" % (HDR + Q1_F * FRAG + 13 * 16))
    a("buffer_store_dwordx4 v[36:39], v10, s[12:15], s21 offen%s" % SC)
    a("v_mov_b32 v40, s17")
    a("v_mov_b32 v41, s46")
    a("v_mov_b32 v12, %d" % HDR2)
    a("s_mov_b64 exec, 1")
    a("buffer_store_dwordx2 v[40:41], v12, s[12:15], 0 offen%s" % SC)
    a("s_mov_b64 exec, -1")
    a.label("L_prep_sig0"); a.reset_hist()
    a("s_waitcnt vmcnt(0)")
    a.label("L_prep_sig"); a.reset_hist()
    a("s_cmp_lt_u32 s62, 2")
    a("s_cselect_b32 s21, 1, 26")
    a("s_cselect_b32 s22, 0, 1")
    a("s_lshl2_add_u32 s20, s22, 128")
    signal(a, 20, 0x100, 8, "s21", 22, 12, 13)
    a.label("L_prep_done"); a.reset_hist()
    a("s_setprio 0")

def poll_flag(a, vt, voff, srdreg, op, target, sleep):
    l = newlab("p"); d = newlab("d")
    a("s_mov_b32 s60, %d" % SPIN)
    a.label(l)
    a("%s %s, v%d, s[%d:%d], 0 offen sc0 sc1" % (op, vr(vt), voff, srdreg, srdreg + 3))
    a("s_waitcnt vmcnt(0)")
    a("v_readfirstlane_b32 s61, v%d" % vt)
    a("s_cmp_eq_u32 s61, 0x%x" % target)
    a("s_cbranch_scc1 %s" % d)
    a("s_sub_u32 s60, s60, 1")
    a("s_cbranch_scc1 %s" % d)
    a("s_sleep %d" % sleep)
    a("s_branch %s" % l)
    a.label(d)

def part2_load(a, vC, vOne, first_sleep=0):
    srd(a, 16, "dbg")
    srd(a, 20, "ws", size=IMG - P2_OFF, off=P2_OFF)
    a("v_mov_b32 v4, 0")
    l1 = newlab("q"); l2 = newlab("q")
    a("s_cmp_lg_u32 s34, 0")
    a("s_cbranch_scc1 %s" % l1)
    if first_sleep: wait_lds(a, vC, 2, C6, 1, sleep=8)
    poll_flag(a, 2, 4, 16, "buffer_load_ushort", 0x101, 16)
    arrive(a, vC, vOne, C5)
    a("s_branch %s" % l2)
    a.label(l1)
    wait_lds(a, vC, 2, C5, 1, sleep=2)
    a.label(l2)
    a("v_lshlrev_b32 v4, 4, v1")
    a("s_lshl_b32 s30, s34, 10")
    for k in range(15):
        a("s_add_u32 m0, s30, %d" % (4096 * k))
        a("s_add_u32 s29, s30, %d" % (4096 * k))
        a("buffer_load_dwordx4 v4, s[20:23], s29 offen%s lds" % SC)
    a("s_waitcnt vmcnt(0)")
    a("v_mov_b32 v4, 2")
    arrive(a, vC, 4, C4)

RING, DEPTH = 4, 3
def dnn(a):
    vC, vOne = 28, 29
    a("v_mov_b32 v%d, %d" % (vC, L_CNT))
    a("v_mov_b32 v%d, 1" % vOne)
    a("s_cmp_lg_u32 s5, 0")
    a("s_cbranch_scc1 L_dnn_go")
    a("s_barrier")
    prep(a, vC, vOne)
    a("s_mov_b32 s34, s3")
    stamp(a)
    st0 = _st[0]
    part2_load(a, vC, vOne, first_sleep=100)
    stamp_flush(a)
    _st[0] = 2
    a("s_endpgm")
    a.label("L_dnn_go"); a.reset_hist()
    a("s_setprio 3")
    a("s_mov_b32 s34, s3")
    srd(a, 8, "table"); srd(a, 12, "w1"); srd(a, 16, "idx"); srd(a, 20, "b1"); srd(a, 24, "w2")
    IDX = 10
    a("s_lshl_b32 s28, s4, 7")
    a("s_lshl_b32 s29, s34, 5")
    a("s_add_u32 s28, s28, s29")
    a("v_lshrrev_b32 v3, 2, v1")
    a("v_add_u32 v3, s28, v3")
    a("v_mul_u32_u24 v3, 104, v3")
    a("v_and_b32 v8, 3, v1")
    a("v_lshl_add_u32 v3, v8, 2, v3")
    for h in range(2):
        for t in range(7):
            a("buffer_load_dword v%d, v3, s[16:19], 0 offen offset:%d" % (IDX + 7 * h + t, 16 * 104 * h + 16 * t))
    a("s_sub_u32 s35, s5, 1")
    a("v_and_b32 v4, 127, v0")
    a("v_lshlrev_b32 v4, 1, v4")
    a("s_lshl_b32 s29, s35, 8")
    a("v_mov_b32 v30, 0")
    a("v_mov_b32 v31, 0")
    a("buffer_load_short_d16_hi v30, v4, s[20:23], s29 offen")
    a("buffer_load_short_d16_hi v31, v4, s[24:27], s29 offen")
    a("v_lshrrev_b32 v6, 4, v1")
    a("v_bfe_u32 v7, v1, 2, 2")
    a("v_xor_b32 v7, v7, v6")
    a("v_lshlrev_b32 v7, 6, v7")
    a("v_lshl_add_u32 v7, v8, 4, v7")
    a("v_xor_b32 v9, v6, v8")
    a("v_lshlrev_b32 v9, 4, v9")
    a("s_lshl_b32 s30, s34, 3")
    a("v_add_u32 v6, s30, v6")
    a("v_mul_u32_u24 v6, 1664, v6")
    a("v_add3_u32 v6, v6, v7, s29")
    a("s_lshl_b32 s31, s34, 11")
    def dma_w(t):
        for h in range(2):
            a("s_add_u32 m0, s31, %d" % ((t % RING) * 16384 + 8192 + 1024 * h))
            a("s_mov_b32 s30, %d" % ((t * 32 + 4 * h) * 1664))
            a("buffer_load_dwordx4 v6, s[12:15], s30 offen lds")
    def dma_x(t):
        for h in range(2):
            q = t & 3
            a("v_add_u32_dpp v5, v%d, v9 quad_perm:[%d,%d,%d,%d] row_mask:0xf bank_mask:0xf" % (IDX + 7 * h + (t >> 2), q, q, q, q))
            a("s_add_u32 m0, s31, %d" % ((t % RING) * 16384 + 1024 * h))
            a("buffer_load_dwordx4 v5, s[8:11], 0 offen lds")
    for t in range(DEPTH): dma_w(t)
    a("s_and_b32 s32, s34, 1")
    a("s_lshr_b32 s33, s34, 1")
    a("v_and_b32 v2, 31, v1")
    a("v_lshrrev_b32 v3, 5, v1")
    a("v_bfe_u32 v7, v1, 2, 2")
    a("v_xor_b32 v24, v7, v3")
    a("v_lshlrev_b32 v24, 4, v24")
    a("v_lshl_add_u32 v24, v2, 6, v24")
    a("s_lshl_b32 s30, s32, 12")
    a("v_add_u32 v24, s30, v24")
    a("v_xor_b32 v25, 32, v24")
    a("s_lshl_b32 s30, s33, 1")
    a("v_xor_b32 v26, s30, v7")
    a("v_lshlrev_b32 v26, 6, v26")
    a("v_lshl_add_u32 v26, v7, 8, v26")
    a("v_lshl_add_u32 v26, v3, 11, v26")
    a("v_bfe_u32 v2, v1, 4, 1")
    a("v_lshl_add_u32 v26, v2, 5, v26")
    a("v_lshl_add_u32 v26, v8, 3, v26")
    a("v_xor_b32 v27, 64, v26")
    a("s_lshl_b32 s30, s33, 8")
    a("s_add_u32 s30, s30, %d" % L_DTAB)
    a("v_lshl_add_u32 v7, v3, 4, s30")
    a("s_barrier")
    a("s_waitcnt vmcnt(%d)" % (2 * DEPTH))
    stamp(a)
    for k in range(14):
        a("v_lshlrev_b32 v%d, 6, v%d" % (IDX + k, IDX + k))
    for t in range(DEPTH): dma_x(t)
    a("v_and_b32 v4, 255, v0")
    a("v_cmp_gt_u32 vcc, 128, v4")
    a("v_lshlrev_b32 v4, 2, v4")
    a("v_add_u32 v4, %d, v4" % L_DTAB)
    a("v_cndmask_b32 v30, v31, v30, vcc")
    a("ds_write_b32 v4, v30")
    ACC = 32
    FR = 96
    def mf(s, st):
        b = FR + 32 * (s % 2)
        for tl in range(2):
            for mt in range(2):
                ac = vr(ACC + 32 * tl + 16 * mt, 16)
                a("v_mfma_f32_32x32x16_bf16 %s, %s, %s, %s" % (ac, vr(b + 16 + 8 * tl + 4 * st, 4), vr(b + 8 * mt + 4 * st, 4), ac))
    def vm(s):
        return 2 * (DEPTH - 1 - s) + 4 * min(s, 26 - DEPTH) if s < DEPTH else 4 * (min(s + DEPTH - 1, 25) - s)
    a("s_waitcnt vmcnt(%d) lgkmcnt(0)" % vm(0))
    arrive(a, vC, vOne, CD)
    for s in range(26):
        wait_lds(a, vC, 2, CD, 4 * (s + 1), sleep=0)
        if s in (0, 5, 10, 15, 20, 25): stamp(a)
        if s == 0:
            for tl in range(2):
                for mt in range(2):
                    for g in range(4):
                        a("ds_read_b128 %s, v7 offset:%d" % (vr(ACC + 32 * tl + 16 * mt + 4 * g, 4), 128 * tl + 32 * g))
        so = (s % RING) * 16384
        b = FR + 32 * (s % 2)
        for st in range(2):
            for mt in range(2):
                a("ds_read_b128 %s, v%d offset:%d" % (vr(b + 8 * mt + 4 * st, 4), 24 + st, so + 2048 * mt))
            for tl in range(2):
                for t in range(2):
                    a("ds_read_b64_tr_b16 %s, v%d offset:%d" % (vr(b + 16 + 8 * tl + 4 * st + 2 * t, 2), 26 + tl, so + 8192 + st * 4096 + t * 1024))
        if s + DEPTH < 26:
            dma_x(s + DEPTH); dma_w(s + DEPTH)
        if s > 0: mf(s - 1, 0)
        a("s_waitcnt vmcnt(%d) lgkmcnt(0)" % (vm(s + 1) if s < 25 else 0))
        arrive(a, vC, vOne, CD)
        if s > 0: mf(s - 1, 1)
    mf(25, 0); mf(25, 1)
    wait_lds(a, vC, 2, CD, 4 * 27, sleep=0)
    stamp(a)
    part2_load(a, vC, vOne)
    stamp(a)
    a("s_setprio %d" % OPT.get("geluprio", 1))
    W2 = 96
    a("v_mov_b32 v8, %s" % fbits(-2.302208198144325))
    a("s_mov_b32 s30, %s" % fbits(-0.10294323958002470))
    for tl in range(2):
        for g in range(4):
            a("ds_read_b128 %s, v7 offset:%d" % (vr(W2 + 16 * tl + 4 * g, 4), 512 + 128 * tl + 32 * g))
    a("s_waitcnt lgkmcnt(0)")
    G = 4
    first = {}
    for tl in range(2):
        for mt in range(2):
            for k0 in range(0, 16, G):
                ks = range(k0, k0 + G)
                A_ = lambda k: ACC + 32 * tl + 16 * mt + k
                T = lambda k: 10 + (k % G)
                for k in ks: a("v_mul_f32 v%d, v%d, v%d" % (T(k), A_(k), A_(k)))
                for k in ks: a("v_fma_f32 v%d, v%d, s30, v8" % (T(k), T(k)))
                for k in ks: a("v_mul_f32 v%d, v%d, v%d" % (T(k), T(k), A_(k)))
                for k in ks: a("v_exp_f32 v%d, v%d" % (T(k), T(k)))
                for k in ks: a("v_mul_f32 v%d, v%d, v%d" % (A_(k), A_(k), W2 + 16 * tl + k))
                for k in ks: a("v_add_f32 v%d, 1.0, v%d" % (T(k), T(k)))
                for k in ks: a("v_rcp_f32 v%d, v%d" % (T(k), T(k)))
                for k in ks:
                    p = 16 + 2 * mt + (k & 1)
                    if p not in first:
                        first[p] = 1
                        a("v_mul_f32 v%d, v%d, v%d" % (p, A_(k), T(k)))
                    else:
                        a("v_fmac_f32 v%d, v%d, v%d" % (p, A_(k), T(k)))
    a("v_add_f32 v16, v16, v17")
    a("v_add_f32 v18, v18, v19")
    a("v_permlane32_swap_b32 v16, v18")
    a("v_add_f32 v16, v16, v18")
    srd(a, 20, "ws", size=32 * 14 * 512, off=WS_PART)
    a("s_mul_i32 s28, s4, 7")
    a("s_add_u32 s28, s28, s35")
    a("s_lshl_b32 s28, s28, 1")
    a("s_add_u32 s28, s28, s33")
    a("s_lshl_b32 s28, s28, 9")
    a("s_lshl_b32 s29, s32, 8")
    a("s_add_u32 s28, s28, s29")
    a("v_lshlrev_b32 v4, 2, v1")
    a("buffer_store_dword v16, v4, s[20:23], s28 offen%s" % SC)
    a("s_waitcnt vmcnt(0)")
    a("s_mov_b64 exec, 1")
    a("ds_add_rtn_u32 v2, v%d, v%d offset:%d" % (vC, vOne, CP))
    a("s_mov_b64 exec, -1")
    a("s_waitcnt lgkmcnt(0)")
    a("v_readfirstlane_b32 s28, v2")
    a("s_cmp_lg_u32 s28, 3")
    a("s_cbranch_scc1 L_dnn_end")
    a("s_lshl_b32 s28, s4, 2")
    a("s_add_u32 s28, s28, 128")
    a("s_add_u32 s29, s4, 8")
    signal(a, 28, 1, 0, "6", 29, 2, 3)
    a.label("L_dnn_end"); a.reset_hist()
    stamp_flush(a)
    a("s_endpgm")

def cin(a):
    vOne, vRot, vA, vW, vC, vT = 0, 2, 4, 5, 6, 7
    vE = [8, 9]; vNX = [10, 11]; vS = [12, 13]; TS = [(14, 15, 16), (17, 18, 19)]
    X = [20, 33]; vP = 46; vB = 48; vF = 49
    Z = [52, 56]; AF = 60; ACC = [76, 92]; Y = [108, 121]; ACG = [134, 150]; WC = 134; U = [108, 115]; FL = [108, 116]
    XB = [52, 66]; XF = 80
    a("s_sub_u32 s35, s3, 4")
    a("v_subrev_u32 v0, 256, v0")
    srd(a, 8, "table"); srd(a, 12, "wcin"); srd(a, 16, "idx"); srd(a, 20, "wout"); srd(a, 24, "w1")
    a("s_lshl_b32 s6, s4, 7")
    a("s_lshl_b32 s7, s5, 4")
    a("s_add_u32 s6, s6, s7")
    a("s_lshl_b32 s7, s35, 1")
    a("s_add_u32 s36, s6, s7")
    a("s_mul_i32 s7, s36, 104")
    a("v_and_b32 v3, 60, v1")
    for q in range(3):
        a("buffer_load_dword v%d, v3, s[16:19], s7 offen offset:%d" % (46 + q, 64 * q))
    a("v_min_u32 v3, 12, v3")
    a("buffer_load_dword v49, v3, s[16:19], s7 offen offset:192")
    a("v_lshlrev_b32 v19, 4, v1")
    a("s_lshl_b32 s40, s35, 10")
    for k in range(5):
        a("s_add_u32 s41, s40, %d" % (8192 * k))
        if k == 4: a("s_min_u32 s41, s41, %d" % (34 * 1024))
        a("s_add_u32 m0, s41, %d" % L_P1)
        a("buffer_load_dwordx4 v19, s[12:15], s41 offen lds")
    a("v_mov_b32 v9, %s" % BIG)
    lane_piece(a, 12, 13, 10, 14, 15, 11, "s[50:51]", 9)
    a("v_and_b32 v14, 15, v0")
    a("v_lshrrev_b32 v15, 4, v0")
    a("v_mad_u32_u24 v15, v15, 13, v14")
    a("v_lshlrev_b32 v15, 1, v15")
    a("v_cmp_gt_u32 vcc, 13, v14")
    a("v_cndmask_b32 v15, v9, v15, vcc")
    a("v_mov_b32 v50, 0")
    a("buffer_load_short_d16_hi v50, v15, s[20:23], 0 offen")
    a("v_mov_b32 v%d, %d" % (vC, L_CNT))
    a("v_mov_b32 v3, 0")
    a("v_lshl_add_u32 v7, v1, 2, v%d" % vC)
    a("v_cmp_gt_u32 vcc, 16, v0")
    a("s_and_saveexec_b64 s[6:7], vcc")
    a("ds_write_b32 v7, v3")
    a("s_mov_b64 exec, s[6:7]")
    a("s_waitcnt lgkmcnt(0)")
    a("s_barrier")
    a("s_lshl_b32 s37, s35, 12")
    a("s_add_u32 s37, s37, %d" % L_XS)
    a("v_and_b32 v14, 3, v1")
    a("v_lshlrev_b32 v14, 4, v14")
    a("v_bfe_u32 v15, v1, 2, 2")
    a("v_lshlrev_b32 v15, 6, v15")
    a("v_bfe_u32 v16, v1, 4, 1")
    a("v_lshl_add_u32 v15, v16, 5, v15")
    a("v_lshrrev_b32 v16, 1, v14")
    a("v_add3_u32 v17, v15, v16, s37")
    a("v_and_b32 v14, 3, v1")
    a("v_bfe_u32 v15, v1, 3, 2")
    a("v_lshl_add_u32 v14, v15, 2, v14")
    a("v_lshrrev_b32 v16, 1, v15")
    a("v_xor_b32 v15, v15, v16")
    a("v_lshrrev_b32 v16, 2, v1")
    a("v_xor_b32 v15, v15, v16")
    a("v_and_b32 v15, 1, v15")
    a("v_mad_u32_u24 v15, v15, 14, v14")
    a("v_cmp_gt_u32 vcc, 13, v14")
    a("v_cndmask_b32 v15, 13, v15, vcc")
    a("v_lshrrev_b32 v3, 5, v1")
    a("v_mad_u32_u24 v15, v3, 27, v15")
    a("v_lshlrev_b32 v%d, 4, v15" % vA)
    a("v_add_u32 v%d, %d, v%d" % (vA, L_Q0, vA))
    a("v_lshlrev_b32 v%d, 6, v3" % vW)
    a("v_add_u32 v%d, %d, v%d" % (vW, L_WTAB, vW))
    a("v_lshlrev_b32 v%d, 4, v3" % vRot)
    a("v_cmp_ne_u32 s[38:39], 0, v3")
    a("v_lshlrev_b32 v18, 2, v0")
    a("v_add_u32 v18, %d, v18" % L_WTAB)
    a("v_cmp_gt_u32 s[52:53], v9, v9") if False else None
    a("v_mul_u32_u24 v14, 0x0202, v12")
    a("v_lshlrev_b32 v14, 16, v14")
    a("v_add_u32 v20, 0x01000c0c, v14")
    a("v_sub_u32 v21, 0x03020c0c, v14")
    a("v_lshlrev_b32 v14, 1, v14")
    a("v_add_u32 v22, 0x01000c0c, v14")
    a("v_sub_u32 v23, 0x07060c0c, v14")
    a("v_add_u32 v13, %d, v13" % L_P1)
    AD = list(range(24, 46)) + [8, 11]
    for k in range(3):
        for q in range(4):
            n = 4 * k + q
            a("s_lshl_b32 s40, s35, 2")
            a("s_add_u32 s40, s40, %d" % (32 * k + q))
            a("s_min_u32 s40, s40, 90")
            a("s_mul_i32 s41, s40, 79")
            a("s_lshr_b32 s41, s41, 10")
            a("s_mul_i32 s42, s41, 13")
            a("s_sub_u32 s40, s40, s42")
            a("s_add_u32 s41, s41, s40")
            a("s_sub_u32 s42, s41, 13")
            a("s_min_u32 s41, s41, s42")
            a("s_mul_i32 s42, s40, 104")
            a("s_lshl2_add_u32 s42, s41, s42")
            a("s_mul_i32 s43, s41, 104")
            a("s_lshl2_add_u32 s43, s40, s43")
            a("v_add_u32 v%d, s42, v13" % AD[2 * n])
            a("v_add_u32 v%d, s43, v13" % AD[2 * n + 1])
    a("v_and_b32 v14, 3, v1")
    a("v_lshlrev_b32 v14, 4, v14")
    a("s_waitcnt vmcnt(6)")
    stamp(a)
    for q in range(4):
        a("v_lshl_add_u32 v%d, v%d, 6, v14" % (46 + q, 46 + q))
        a("s_add_u32 m0, s37, %d" % (1024 * q))
        a("buffer_load_dwordx4 v%d, s[8:11], 0 offen lds" % (46 + q))
    NW = 4
    if OPT.get("w1warm", 1):
        a("s_lshr_b32 s7, s2, 3")
        a("s_lshl_b32 s7, s7, 7")
        a("v_lshlrev_b32 v15, 12, v0")
        a("buffer_load_dword v51, v15, s[24:27], s7 offen")
        NW = 5
    a("v_cmp_gt_u32 vcc, 128, v0")
    a("v_mov_b32 v%d, 1" % vOne)
    a("s_waitcnt vmcnt(%d)" % NW)
    arrive(a, vC, vOne, S1)
    stamp(a)
    a("s_and_saveexec_b64 s[6:7], vcc")
    a("ds_write_b32 v18, v50")
    a("s_mov_b64 exec, s[6:7]")
    wait_lds(a, vC, vT, S1, 8, sleep=0)
    RAW = 52
    for n in range(12):
        a("ds_read2_b32 %s, v%d offset0:0 offset1:13" % (vr(RAW + 4 * n, 2), AD[2 * n]))
        a("ds_read2_b32 %s, v%d offset0:0 offset1:13" % (vr(RAW + 4 * n + 2, 2), AD[2 * n + 1]))
    for n in range(12):
        r = RAW + 4 * n
        if n % 4 == 0: a("s_waitcnt lgkmcnt(%d)" % min(15, 16 - 2 * n) if n else "s_waitcnt lgkmcnt(14)")
        a("v_perm_b32 v14, v%d, v%d, v22" % (r + 3, r + 2))
        a("v_perm_b32 v15, v%d, v%d, v23" % (r + 3, r + 2))
        a("v_perm_b32 v%d, v%d, v%d, v20" % (r, r, r))
        a("v_perm_b32 v%d, v%d, v%d, v21" % (r + 1, r + 1, r + 1))
        a("v_add_f32 v%d, v%d, v14" % (r, r))
        a("v_add_f32 v%d, v%d, v15" % (r + 1, r + 1))
        a(("v_max_f32 v16, |v%d|, |v%d|" % (r, r + 1)) if n == 0 else ("v_max3_f32 v16, v16, |v%d|, |v%d|" % (r, r + 1)))
    max_publish(a, 16, 14, vC, 35, MX)
    a("s_waitcnt lgkmcnt(0)")
    arrive(a, vC, vOne, S2)
    wait_lds(a, vC, vT, S2, 8, sleep=0)
    stamp(a)
    for k in range(2):
        a("ds_read_b128 %s, v%d offset:%d" % (vr(24 + 4 * k, 4), vC, MX + 16 * k))
    a("s_waitcnt lgkmcnt(0)")
    max_fold(a, 44, 24, 8)
    a("s_lshr_b32 s44, s44, 16")
    w_scale(a, 44, 54)
    a("s_mov_b32 s58, -1")
    a("s_mov_b32 s59, 0x3fffff")
    a("s_mul_i32 s40, s35, %d" % FRAG)
    a("s_add_u32 s40, s40, %d" % L_Q0)
    a("v_add_u32 v18, s40, v19")
    for k in range(3):
        for q in range(4):
            r = RAW + 4 * (4 * k + q)
            sc = 54
            if k == 0:
                a("s_lshl_b32 s41, s35, 2")
                a("s_cmp_lt_u32 s41, %d" % (13 - q))
                a("s_cselect_b32 s41, 0x800000, 0")
                a("s_sub_u32 s41, s54, s41")
                sc = 41
            if k == 2 and q == 3:
                a("s_cmp_eq_u32 s35, 6")
                a("s_cselect_b32 s41, 0, s54")
                sc = 41
            a("v_mul_f32 v%d, s%d, v%d" % (r, sc, r))
            a("v_mul_f32 v%d, s%d, v%d" % (r + 1, sc, r + 1))
            a("v_cvt_pk_f16_f32 v%d, v%d, v%d" % (r, r, r + 1))
            a("v_cndmask_b32 v%d, 0, v%d, s[50:51]" % (24 + 4 * k + q, r))
        if k == 2:
            a("s_cmp_eq_u32 s35, 7")
            a("s_cbranch_scc1 L_noq0")
        a("s_mov_b64 exec, s[58:59]")
        a("ds_write_b128 v18, %s offset:%d" % (vr(24 + 4 * k, 4), 8 * FRAG * k))
        a("s_mov_b64 exec, -1")
    a.label("L_noq0")
    a("s_waitcnt lgkmcnt(0)")
    arrive(a, vC, vOne, S3)
    a("s_sub_i32 s44, 0, s44")
    stamp(a)
    a("s_waitcnt vmcnt(%d)" % (NW - 4))
    stamp(a)
    for s in range(2):
        for t in range(7):
            a("ds_read_b64_tr_b16 %s, v17 offset:%d" % (vr(XB[s] + 2 * t, 2), 1664 * s + 256 * t))
    a("s_waitcnt lgkmcnt(0)")
    arrive(a, vC, vOne, CX)
    for s in range(2):
        m, t, u = TS[s]
        for p in range(13):
            a("v_lshlrev_b32 v%d, 16, v%d" % (XF + 2 * p, XB[s] + p))
            a("v_and_b32 v%d, 0xffff0000, v%d" % (XF + 2 * p + 1, XB[s] + p))
        a("v_max3_f32 v%d, |v%d|, |v%d|, |v%d|" % (m, XF, XF + 1, XF + 2))
        a("v_max3_f32 v%d, |v%d|, |v%d|, |v%d|" % (t, XF + 3, XF + 4, XF + 5))
        for j in range(6, 26, 4):
            a("v_max3_f32 v%d, v%d, |v%d|, |v%d|" % (m, m, XF + j, XF + j + 1))
            a("v_max3_f32 v%d, v%d, |v%d|, |v%d|" % (t, t, XF + j + 2, XF + j + 3))
        a("v_max_f32 v%d, v%d, v%d" % (m, m, t))
        a("v_frexp_exp_i32_f32 v%d, v%d" % (m, m))
        a("v_sub_u32 v%d, 7, v%d" % (m, m))
        a("v_min_i32 v%d, 126, v%d" % (m, m))
        a("v_ldexp_f32 v%d, 1.0, v%d" % (t, m))
        a("v_sub_u32 v%d, 0, v%d" % (vNX[s], m))
        a("v_mov_b32 v%d, 0" % vS[s])
        a("v_lshl_add_u32 v%d, v%d, 1, s44" % (vE[s], vNX[s]))
        for p in range(13): a("v_fma_mixlo_f16 v%d, v%d, v%d, 0" % (X[s] + p, XF + 2 * p, t))
        for p in range(13): a("v_fma_mixhi_f16 v%d, v%d, v%d, 0" % (X[s] + p, XF + 2 * p + 1, t))
    def mkY():
        for s in range(2):
            for p in range(13): a("v_alignbit_b32 v%d, v%d, v%d, v%d" % (Y[s] + p, X[s] + p, X[s] + p, vRot))
    mkY()
    stamp(a)
    a("s_cmp_lt_u32 s35, 4")
    a("s_cbranch_scc1 L_cin_lo2")
    a("s_cmp_lg_u32 s35, 7")
    a("s_cbranch_scc1 L_cin_hiw")
    srd(a, 16, "dbg")
    a("v_mov_b32 v3, 0")
    poll_flag(a, vT, 3, 16, "buffer_load_ubyte", 1, OPT.get("f1sleep", 8))
    arrive(a, vC, vOne, CX)
    a.label("L_cin_hiw")
    srd(a, 12, "ws", size=P2_OFF - P1_OFF, off=P1_OFF)
    a("v_lshlrev_b32 v3, 4, v1")
    a("s_sub_u32 s40, s35, 4")
    a("s_lshl_b32 s40, s40, 10")
    wait_lds(a, vC, vT, CX, 9)
    for k in range(19):
        a("s_add_u32 s41, s40, %d" % (4096 * k))
        if k == 18: a("s_min_u32 s41, s41, %d" % ((P1_UNITS - 1) * 1024))
        a("s_add_u32 m0, s41, %d" % L_P1)
        a("buffer_load_dwordx4 v3, s[12:15], s41 offen%s lds" % SC)
    a.label("L_cin_lo2"); a.reset_hist()
    wait_lds(a, vC, vT, S3, 8)
    stamp(a)

    def zq(s, r, dst):
        if r >= 91: a("v_mov_b32 v%d, 0" % dst); return
        d, sa = divmod(r, 13); tb = (sa + d) % 13
        a("v_pk_mul_f16 v%d, v%d, v%d" % (dst, X[s] + sa, Y[s] + tb))
    def zl(s, r, dst):
        if r >= 169: a("v_mov_b32 v%d, 0" % dst); return
        il, t = divmod(r, 13)
        a("v_pk_mul_f16 v%d, v%d, v%d op_sel:[%d,0] op_sel_hi:[%d,1]" % (dst, U[s] + il // 2, X[s] + t, il & 1, il & 1))
    def rd(k):
        a("ds_read_b128 %s, v%d offset:%d" % (vr(AF + 4 * (k % 4), 4), vA, FRAG * k))
    def pre():
        for k in range(3): rd(k)
    def body(nst, zf, acc, mid=None, raise6=False):
        for s in range(2):
            for q in range(4): zf(s, q, Z[s] + q)
        for st in range(nst):
            a("s_waitcnt lgkmcnt(%d)" % min(2, nst - 1 - st))
            if st == 6 and raise6:
                lb = newlab("pr")
                a("s_cmp_lg_u32 s49, 0")
                a("s_cbranch_scc1 %s" % lb)
                a("s_setprio 1")
                a.label(lb)
            for s in range(2):
                a("v_mfma_f32_32x32x16_f16 %s, %s, %s, %s" % (vr(acc[s], 16), vr(AF + 4 * (st % 4), 4), vr(Z[s], 4), "0" if st == 0 else vr(acc[s], 16)))
                if s == 1 and st + 3 < nst: rd(st + 3)
                if st + 1 < nst:
                    for q in range(4): zf(s, 4 * (st + 1) + q, Z[s] + q)
            if mid and st == mid[0]: mid[1]()
    def wload():
        for g in range(4):
            a("ds_read_b128 %s, v%d offset:%d" % (vr(WC + 4 * g, 4), vW, 16 * g))
    def dot(s, wbase, ebase):
        m, t, u = TS[s]
        a("v_mul_f32 v%d, v%d, v%d" % (u, wbase, ACC[s]))
        for j in range(1, 13): a("v_fmac_f32 v%d, v%d, v%d" % (u, wbase + j, ACC[s] + j))
        a("v_ldexp_f32 v%d, v%d, v%d" % (u, u, ebase))
        a("v_add_f32 v%d, v%d, v%d" % (vS[s], vS[s], u))
    def trans(sneg):
        for s in range(2):
            ac = ACC[s]; m, t, u = TS[s]
            a("v_max3_f32 v%d, |v%d|, |v%d|, |v%d|" % (m, ac, ac + 1, ac + 2))
            a("v_max3_f32 v%d, |v%d|, |v%d|, |v%d|" % (t, ac + 3, ac + 4, ac + 5))
            a("v_max3_f32 v%d, v%d, |v%d|, |v%d|" % (m, m, ac + 6, ac + 7))
            a("v_max3_f32 v%d, v%d, |v%d|, |v%d|" % (t, t, ac + 8, ac + 9))
            a("v_max3_f32 v%d, v%d, |v%d|, |v%d|" % (m, m, ac + 10, ac + 11))
            a("v_max3_f32 v%d, v%d, v%d, |v%d|" % (m, m, t, ac + 12))
            a("v_mov_b32 v%d, v%d" % (t, m))
        for s in range(2):
            m, t, u = TS[s]
            a("v_permlane32_swap_b32 v%d, v%d" % (m, t))
        for s in range(2):
            m, t, u = TS[s]
            a("v_max_f32 v%d, v%d, v%d" % (m, m, t))
            a("v_frexp_exp_i32_f32 v%d, v%d" % (m, m))
            a("v_sub_u32 v%d, 8, v%d" % (m, m))
            a("v_min_i32 v%d, 126, v%d" % (m, m))
            a("v_ldexp_f32 v%d, 1.0, v%d" % (t, m))
        for s in range(2):
            ac = ACC[s]; m, t, u = TS[s]
            for p in range(7): a("v_fma_mixlo_f16 v%d, v%d, v%d, 0" % (U[s] + p, ac + 2 * p, t))
            for p in range(6): a("v_fma_mixhi_f16 v%d, v%d, v%d, 0" % (U[s] + p, ac + 2 * p + 1, t))
        for s in range(2):
            m, t, u = TS[s]
            dot(s, WC, vE[s])
            a("v_sub_u32 v%d, v%d, v%d" % (vE[s], vE[s], m))
            a("v_add3_u32 v%d, v%d, v%d, s%d" % (vE[s], vE[s], vNX[s], sneg))
    a("s_setprio 3")
    pre()
    def landed():
        a("s_waitcnt vmcnt(0) lgkmcnt(0)")
        arrive(a, vC, vOne, C2)
        a("s_waitcnt lgkmcnt(0)")
    body(23, zq, ACC, mid=(OPT.get("landst", 8), landed))
    a("s_setprio 2")
    stamp(a)
    a("v_add_u32 v%d, %d, v%d" % (vA, 23 * FRAG + 16, vA))
    a("s_mov_b32 s42, 0")
    a("v_add_u32 v3, %d, v%d" % (C2, vC))
    a("s_mov_b32 s46, %d" % L_P1)
    a("s_mov_b32 s49, 1")
    a.label("L_layer")
    wait_lds(a, 3, vT, 0, 8)
    a("v_mov_b32 v7, s46")
    a("ds_read_b32 v7, v7")
    wload()
    pre()
    a("s_waitcnt lgkmcnt(3)")
    a("v_readfirstlane_b32 s45, v7")
    a("s_sub_i32 s45, 0, s45")
    trans(45)
    stamp_loop(a, 42, 2, 0, 0)
    body(43, zl, ACC, raise6=True)
    a("s_setprio 0")
    a("s_cmp_lg_u32 s42, 0")
    a("s_cbranch_scc1 L_not0")
    a("s_setprio 1")
    arrive(a, vC, vOne, C6)
    a.label("L_not0")
    stamp_loop(a, 42, 2, 1, 6)
    a("v_add_u32 v%d, 128, v%d" % (vW, vW))
    a("s_lshr_b32 s41, s35, 2")
    a("s_cmp_eq_u32 s42, 1")
    a("s_mov_b32 s43, %d" % (43 * FRAG))
    a("s_cselect_b32 s43, 0x%x, s43" % ((-L_L2) & 0xffffffff))
    a("s_mov_b32 s46, %d" % (L_P1 + 8))
    a("s_cselect_b32 s46, %d, s46" % (68 * FRAG + 8))
    a("s_cselect_b32 s41, s41, 0")
    a("s_cselect_b32 s40, 4, 0")
    a("s_xor_b32 s49, s41, 1")
    a("v_add_u32 v%d, s43, v%d" % (vA, vA))
    a("v_add_u32 v3, s40, v3")
    a("s_add_u32 s42, s42, 1")
    a("s_cmp_lt_u32 s42, 3")
    a("s_cbranch_scc1 L_layer")
    srd(a, 16, "dbg")
    a("s_add_u32 s28, s4, 8")
    a("v_mov_b32 v3, s28")
    a("buffer_load_ubyte v%d, v3, s[16:19], 0 offen sc0 sc1" % vF)
    srd(a, 24, "bout")
    a("v_subrev_u32 v7, 14, v1")
    a("v_lshlrev_b32 v7, 4, v7")
    a("v_mov_b32 v%d, 0" % vB)
    a("buffer_load_short_d16_hi v%d, v7, s[24:27], 0 offen" % vB)
    wload()
    rd(23); rd(24)
    a("v_mov_b32 v7, %d" % (68 * FRAG))
    a("ds_read_b64 v[50:51], v7")
    for s in range(2):
        for p in range(6): a("v_cndmask_b32 v%d, v%d, v%d, s[38:39]" % (FL[s] + p, X[s] + p, X[s] + p + 7))
        a("v_cndmask_b32 v%d, v%d, 0, s[38:39]" % (FL[s] + 6, X[s] + 6))
        a("v_mov_b32 v%d, 0" % (FL[s] + 7))
    a("s_waitcnt lgkmcnt(0)")
    for s in range(2): dot(s, WC, vE[s])
    for k in range(2):
        for s in range(2):
            a("v_mfma_f32_32x32x16_f16 %s, %s, %s, %s" % (vr(ACG[s], 16), vr(AF + 4 * ((23 + k) % 4), 4), vr(FL[s] + 4 * k, 4), "0" if k == 0 else vr(ACG[s], 16)))
    pre()
    mkY()
    for s in range(2):
        m, t, u = TS[s]
        a("v_add_u32 v%d, v%d, v%d" % (vE[s], vE[s], vNX[s]))
        a("v_sub_u32 v%d, v%d, v51" % (m, vE[s]))
        dot(s, ACG[s], m)
        a("v_add_u32 v%d, v%d, v%d" % (vE[s], vE[s], vNX[s]))
        a("v_sub_u32 v%d, v%d, v50" % (vE[s], vE[s]))
    def fetch_loads():
        srd(a, 20, "ws", size=32 * 14 * 512, off=WS_PART)
        a("s_mul_i32 s28, s4, %d" % (14 * 512))
        a("s_and_b32 s29, s36, 127")
        a("s_lshl_b32 s29, s29, 2")
        a("s_add_u32 s28, s28, s29")
        a("v_lshlrev_b32 v3, 9, v1")
        a("v_cmp_gt_u32 vcc, 14, v1")
        a("v_mov_b32 v7, %s" % BIG)
        a("v_cndmask_b32 v3, v7, v3, vcc")
        a("buffer_load_dwordx2 %s, v3, s[20:23], s28 offen%s" % (vr(vP, 2), SC))
    def fetch_part():
        a("s_waitcnt vmcnt(0)")
        a("v_readfirstlane_b32 s48, v%d" % vF)
        a("s_cmp_lg_u32 s48, 1")
        a("s_cbranch_scc1 L_notyet")
        fetch_loads()
        a.label("L_notyet")
    stamp(a)
    body(23, zq, ACG, mid=(8, fetch_part))
    stamp(a)
    a("s_cmp_eq_u32 s48, 1")
    a("s_cbranch_scc1 L_havepart")
    poll_flag(a, vF, 3, 16, "buffer_load_ubyte", 1, 16)
    fetch_loads()
    a.label("L_havepart")
    srd(a, 16, "out")
    a("s_lshl_b32 s28, s36, 1")
    a("v_mov_b32 v3, s28")
    a("s_waitcnt vmcnt(0)")
    for s in range(2):
        a("v_add_f32 v%d, v%d, v%d" % (vS[s], vS[s], vP + s))
        a("v_add_f32 v%d, v%d, v%d" % (vS[s], vS[s], vB))
    for s in range(2): dot(s, ACG[s], vE[s])
    for mod in ("row_shr:1 row_mask:0xf bank_mask:0xf bound_ctrl:0", "row_shr:2 row_mask:0xf bank_mask:0xf bound_ctrl:0", "row_shr:4 row_mask:0xf bank_mask:0xf bound_ctrl:0", "row_shr:8 row_mask:0xf bank_mask:0xf bound_ctrl:0", "row_bcast:15 row_mask:0xa bank_mask:0xf", "row_bcast:31 row_mask:0xc bank_mask:0xf"):
        for s in range(2):
            a("v_add_f32_dpp v%d, v%d, v%d %s" % (vS[s], vS[s], vS[s], mod))
    a("v_cvt_pk_bf16_f32 v2, v%d, v%d" % (vS[0], vS[1]))
    a("v_cmp_eq_u32 vcc, 63, v1")
    a("s_and_saveexec_b64 s[6:7], vcc")
    a("buffer_store_dword v2, v3, s[16:19], 0 offen")
    stamp_flush(a)

def main(out):
    a = Asm()
    a.raw("; @launch grid=(256,1,1) block=(768,1,1) lds=%d" % LDS_BYTES)
    a.raw('.amdgcn_target "amdgcn-amd-amdhsa--gfx950"\n.text')
    name = NAME + "_kernel"
    a.raw(".globl %s\n.p2align 8\n.type %s,@function" % (name, name))
    a.label(name)
    a("s_cmp_ge_u32 s2, 256")
    a("s_cbranch_scc1 L_end")
    if DIAG:
        a("s_memrealtime s[86:87]")
        a("s_memtime s[88:89]")
    a("s_load_dwordx16 s[64:79], s[0:1], 0")
    a("s_load_dwordx4 s[80:83], s[0:1], 64")
    a("s_load_dwordx2 s[84:85], s[0:1], 80")
    a("v_lshrrev_b32 v2, 6, v0")
    a("v_and_b32 v1, 63, v0")
    a("v_readfirstlane_b32 s3, v2")
    a("s_and_b32 s6, s2, 7")
    a("s_lshl_b32 s4, s6, 2")
    a("s_lshr_b32 s7, s2, 6")
    a("s_add_u32 s4, s4, s7")
    a("s_lshl_b32 s62, s7, 3")
    a("s_add_u32 s62, s62, s6")
    a("s_bfe_u32 s5, s2, 0x30003")
    a("s_waitcnt lgkmcnt(0)")
    if DIAG:
        a("v_mov_b32 v167, 0")
        a("v_writelane_b32 v167, s86, 0")
        a("v_writelane_b32 v167, s88, 1")
    a("s_cmp_lt_u32 s3, 4")
    a("s_cbranch_scc1 L_dnn")
    _st[0] = 2
    cin(a)
    a.label("L_end")
    a("s_endpgm")
    a.label("L_dnn"); a.reset_hist()
    _st[0] = 2
    dnn(a)
    a.raw('.section .rodata,"a"\n.p2align 6')
    a.raw(""".amdhsa_kernel %s
  .amdhsa_next_free_vgpr 168
  .amdhsa_next_free_sgpr 102
  .amdhsa_accum_offset 168
  .amdhsa_group_segment_fixed_size 0
  .amdhsa_kernarg_size 88
  .amdhsa_user_sgpr_count 2
  .amdhsa_user_sgpr_kernarg_segment_ptr 1
  .amdhsa_system_sgpr_workgroup_id_x 1
.end_amdhsa_kernel""" % name)
    open(out, "w").write(a.text())
    print("instrs", a.ninstr, "nops", a.nops, file=sys.stderr)

if __name__ == "__main__":
    if "--diag" in sys.argv:
        DIAG = True; sys.argv.remove("--diag")
    for x in list(sys.argv):
        if x.startswith("-D"):
            k, _, v = x[2:].partition("="); OPT[k] = int(v or 1); sys.argv.remove(x)
    main(sys.argv[1] if len(sys.argv) > 1 else "cdna_kernels/%s.s" % NAME)
```

```python
import sys, subprocess
def build(gen, opts, out, wave, k, mode, role=None):
    subprocess.check_call(["python", gen, "--diag", "-Drt=1"] + opts + ["_p.s"], stderr=subprocess.DEVNULL)
    src = open("_p.s").read()
    lines = src.split("\n")
    L = [l for l in lines if l.startswith("; @launch")][0]
    K = L.replace("; @launch ", "; @launch kernel=standalone__deep_cross_xdeepfm__recsys_kernel ")
    body = "\n".join(l for l in lines if not l.startswith("; @launch"))
    red = lambda op, v: "\n".join("    s_nop 1\n    %s_dpp %s, %s, %s %s" % (op, v, v, v, m) for m in (
        "row_shr:1 row_mask:0xf bank_mask:0xf", "row_shr:2 row_mask:0xf bank_mask:0xf", "row_shr:4 row_mask:0xf bank_mask:0xf",
        "row_shr:8 row_mask:0xf bank_mask:0xf", "row_bcast:15 row_mask:0xa bank_mask:0xf", "row_bcast:31 row_mask:0xc bank_mask:0xf"))
    sel = "    v_or_b32 v1, 8, v0\n" if role != 0 else "    v_and_b32 v1, 7, v0\n"
    comb = "v_max_u32" if mode == "max" else "v_min_u32"
    probe = """.globl probe_kernel
.p2align 8
.type probe_kernel,@function
probe_kernel:
    s_cmp_lg_u32 s2, 0
    s_cbranch_scc1 L_probe_end
    s_load_dwordx2 s[4:5], s[0:1], 80
    s_waitcnt lgkmcnt(0)
    s_add_u32 s8, s4, 0x80000
    s_addc_u32 s9, s5, 0
    s_mov_b32 s10, 0x80000
    s_mov_b32 s11, 0x20000
    v_mul_u32_u24 v2, 1536, v0
%s    v_mul_u32_u24 v1, 1536, v1
    v_add_u32 v1, %d, v1
    s_mov_b32 s12, 98304
    s_mov_b32 s13, 196608
    s_mov_b32 s14, 294912
    buffer_load_dword v4, v2, s[8:11], 0 offen
    buffer_load_dword v5, v2, s[8:11], s12 offen
    buffer_load_dword v6, v2, s[8:11], s13 offen
    buffer_load_dword v7, v2, s[8:11], s14 offen
    buffer_load_dword v8, v1, s[8:11], 0 offen
    buffer_load_dword v9, v1, s[8:11], s12 offen
    buffer_load_dword v10, v1, s[8:11], s13 offen
    buffer_load_dword v11, v1, s[8:11], s14 offen
    s_waitcnt vmcnt(0)
    v_min_u32 v4, v4, v5
    v_min_u32 v6, v6, v7
    v_min_u32 v4, v4, v6
    %s v8, v8, v9
    %s v10, v10, v11
    %s v8, v8, v10
%s
%s
    s_nop 1
    v_readlane_b32 s16, v4, 63
    v_readlane_b32 s17, v8, 63
    s_nop 3
    s_sub_u32 s17, s17, s16
    s_min_u32 s17, s17, %d
    s_memrealtime s[18:19]
    s_waitcnt lgkmcnt(0)
L_probe_spin:
    s_memrealtime s[20:21]
    s_waitcnt lgkmcnt(0)
    s_sub_u32 s20, s20, s18
    s_cmp_lt_u32 s20, s17
    s_cbranch_scc1 L_probe_spin
L_probe_end:
    s_endpgm
""" % (sel, wave * 128 + 4 * k, comb, comb, comb, red("v_min_u32", "v4"), red(comb, "v8"), 0 if mode == "null" else 10000)
    desc = """.p2align 6
.amdhsa_kernel probe_kernel
  .amdhsa_next_free_vgpr 32
  .amdhsa_next_free_sgpr 32
  .amdhsa_accum_offset 32
  .amdhsa_group_segment_fixed_size 0
  .amdhsa_kernarg_size 88
  .amdhsa_user_sgpr_count 2
  .amdhsa_user_sgpr_kernarg_segment_ptr 1
  .amdhsa_system_sgpr_workgroup_id_x 1
.end_amdhsa_kernel
"""
    b2 = body.replace('.section .rodata,"a"', probe + '.section .rodata,"a"') + "\n" + desc
    P = "; @launch kernel=probe_kernel grid=(1,1,1) block=(64,1,1) lds=0"
    open(out, "w").write(K + "\n" + P + "\n" + b2)
if __name__ == "__main__":
    gen = sys.argv[1]
    opts = [x for x in sys.argv[2:] if x.startswith("-D")]
    specs = [x for x in sys.argv[2:] if not x.startswith("-D")]
    for i, sp in enumerate(specs):
        f = sp.split(",")
        build(gen, opts, "pr%d.s" % i, int(f[0]), int(f[1]), f[2], int(f[3]) if len(f) > 3 else None)
```

```python
import sys, struct
from asmlib import Asm, vr, sr
from model2 import FRAG, HDR, HDR2, Q0_F, L_F, Q1_F, LIN_F, NFRAG, P2_F, WS_PART

NAME = "standalone__deep_cross_xdeepfm__recsys"
def fbits(x): return "0x%08x" % struct.unpack("<I", struct.pack("<f", x))[0]
SZ = dict(idx=4096 * 26 * 4, table=100000 * 64, wcin=6 * 35152, wout=312, w1=832 * 832 * 2, b1=1664, w2=1664, bout=2, out=8192, dbg=256)
KOFF = dict(idx=0, table=8, wcin=16, wout=24, w1=32, b1=40, w2=48, bout=56, out=64, dbg=72, ws=80)
def kp(name): return 64 + KOFF[name] // 4
IMG = HDR2 + 16
P2_OFF = HDR + P2_F * FRAG
P1_OFF = HDR + L_F * FRAG - 16
P1_UNITS = 73
L_Q0 = 65536
L_P1 = L_Q0 + 23 * FRAG
L_L1 = L_P1 + 16
L_L2 = L_L1 + 43 * FRAG
L_XS = L_P1 + 36 * 1024
L_WTAB = L_P1 + P1_UNITS * 1024
L_DTAB = L_WTAB + 512
L_CNT = L_DTAB + 1024
LDS_BYTES = L_CNT + 64 + 32
assert LDS_BYTES <= 163840 and L_L2 + 43 * FRAG <= L_WTAB
S1, S3, C2, C3, C4, CD, CP, C5, C6, CX = 0, 4, 8, 12, 16, 20, 24, 28, 32, 36
MX = 64
NPREP = 29
BIG = "0x7ffffff0"
SC = " sc1"
SPIN = 1 << 20
DIAG = False
OPT = {}
_st = [0]
_lab = [0]
def newlab(p):
    _lab[0] += 1
    return "L_%s%d" % (p, _lab[0])

def srd(a, d, name, size=None, off=0):
    p = kp(name)
    if off:
        a("s_add_u32 s%d, s%d, 0x%x" % (d, p, off))
        a("s_addc_u32 s%d, s%d, 0" % (d + 1, p + 1))
    else:
        a("s_mov_b32 s%d, s%d" % (d, p))
        a("s_mov_b32 s%d, s%d" % (d + 1, p + 1))
    a("s_mov_b32 s%d, 0x%x" % (d + 2, size if size is not None else SZ[name]))
    a("s_mov_b32 s%d, 0x20000" % (d + 3))

def stamp(a, real=False):
    if not DIAG: return
    a("s_memrealtime s[90:91]" if (real or OPT.get("rt")) else "s_memtime s[90:91]")
    a("s_waitcnt lgkmcnt(0)")
    a("v_writelane_b32 v167, s90, %d" % _st[0])
    _st[0] += 1
def stamp_loop(a, sreg, mul, k, total):
    if not DIAG: return
    a("s_memrealtime s[90:91]" if OPT.get("rt") else "s_memtime s[90:91]")
    a("s_mul_i32 s92, s%d, %d" % (sreg, mul))
    a("s_add_u32 m0, s92, %d" % (_st[0] + k))
    a("s_waitcnt lgkmcnt(0)")
    a("v_writelane_b32 v167, s90, m0")
    _st[0] += total
def stamp_flush(a):
    if not DIAG: return
    stamp(a); stamp(a, True)
    a("s_mov_b64 exec, -1")
    srd(a, 16, "ws", size=0x80000, off=0x80000)
    a("s_mul_i32 s90, s2, 12")
    a("s_add_u32 s90, s90, s3")
    a("s_lshl_b32 s90, s90, 7")
    a("v_lshlrev_b32 v166, 2, v1")
    a("v_cmp_gt_u32 vcc, 32, v1")
    a("s_and_saveexec_b64 s[92:93], vcc")
    a("buffer_store_dword v167, v166, s[16:19], s90 offen")

def arrive(a, vC, vOne, cnt):
    a("s_mov_b64 exec, 1")
    a("ds_add_u32 v%d, v%d offset:%d" % (vC, vOne, cnt))
    a("s_mov_b64 exec, -1")
def wait_lds(a, vC, vT, cnt, target, sleep=1):
    l = newlab("w"); d = newlab("d")
    a("s_mov_b32 s60, %d" % SPIN)
    a.label(l)
    a("ds_read_b32 v%d, v%d offset:%d" % (vT, vC, cnt))
    a("s_waitcnt lgkmcnt(0)")
    a("v_readfirstlane_b32 s61, v%d" % vT)
    a("s_cmp_ge_u32 s61, %s" % target)
    a("s_cbranch_scc1 %s" % d)
    a("s_sub_u32 s60, s60, 1")
    a("s_cbranch_scc1 %s" % d)
    if sleep: a("s_sleep %d" % sleep)
    a("s_branch %s" % l)
    a.label(d)

def wave_max_u32(a, v):
    for sh in (1, 2, 4, 8):
        a("v_max_u32_dpp %s, %s, %s row_shr:%d row_mask:0xf bank_mask:0xf" % (vr(v), vr(v), vr(v), sh))
    a("v_max_u32_dpp %s, %s, %s row_bcast:15 row_mask:0xa bank_mask:0xf" % (vr(v), vr(v), vr(v)))
    a("v_max_u32_dpp %s, %s, %s row_bcast:31 row_mask:0xc bank_mask:0xf" % (vr(v), vr(v), vr(v)))
def max_publish(a, v, t, vC, sw, off):
    wave_max_u32(a, v)
    a("v_readlane_b32 s6, %s, 63" % vr(v))
    a("s_lshl_b32 s7, s%d, 2" % sw)
    a("v_add_u32 %s, s7, v%d" % (vr(t), vC))
    a("v_mov_b32 %s, s6" % vr(v))
    a("ds_write_b32 %s, %s offset:%d" % (vr(t), vr(v), off))
def max_fold(a, dst_s, q, n):
    a("v_max3_u32 %s, %s, %s, %s" % (vr(q), vr(q), vr(q + 1), vr(q + 2)))
    if n == 8:
        a("v_max3_u32 %s, %s, %s, %s" % (vr(q + 3), vr(q + 3), vr(q + 4), vr(q + 5)))
        a("v_max3_u32 %s, %s, %s, %s" % (vr(q), vr(q), vr(q + 6), vr(q + 7)))
    a("v_max_u32 %s, %s, %s" % (vr(q), vr(q), vr(q + 3)))
    a("v_readfirstlane_b32 s%d, %s" % (dst_s, vr(q)))
def w_scale(a, se, ssc):
    a("s_lshr_b32 s%d, s%d, 7" % (se, se))
    a("s_sub_i32 s%d, 141, s%d" % (se, se))
    a("s_min_i32 s%d, s%d, 126" % (se, se))
    a("s_add_i32 s%d, s%d, 127" % (ssc, se))
    a("s_lshl_b32 s%d, s%d, 23" % (ssc, ssc))
def w_convert(a, regs, ssc, t0):
    for k0 in range(0, len(regs), 4):
        g = regs[k0:k0 + 4]
        for k, r in enumerate(g): a("v_lshlrev_b32 v%d, 16, v%d" % (t0 + k, r))
        for k, r in enumerate(g): a("v_and_b32 v%d, 0xffff0000, v%d" % (r, r))
        for k, r in enumerate(g): a("v_mul_f32 v%d, %s, v%d" % (t0 + k, ssc, t0 + k))
        for k, r in enumerate(g): a("v_mul_f32 v%d, %s, v%d" % (r, ssc, r))
        for k, r in enumerate(g): a("v_cvt_pk_f16_f32 v%d, v%d, v%d" % (r, t0 + k, r))
def pk_absmax(a, acc, regs, tmp):
    for k, r in enumerate(regs):
        if k == 0:
            a("v_and_b32 %s, 0x7fff7fff, %s" % (vr(acc), vr(r)))
        else:
            a("v_and_b32 %s, 0x7fff7fff, %s" % (vr(tmp), vr(r)))
            a("v_pk_max_u16 %s, %s, %s" % (vr(acc), vr(acc), vr(tmp)))
    a("v_lshrrev_b32 %s, 16, %s" % (vr(tmp), vr(acc)))
    a("v_and_b32 %s, 0xffff, %s" % (vr(acc), vr(acc)))
    a("v_max_u32 %s, %s, %s" % (vr(acc), vr(acc), vr(tmp)))

def piece(a, P, s, kh, h, t, t2, zmask):
    a("v_mul_u32_u24 %s, 1214, %s" % (vr(s), vr(P)))
    a("v_lshrrev_b32 %s, 16, %s" % (vr(s), vr(s)))
    a("v_mul_u32_u24 %s, 54, %s" % (vr(t), vr(s)))
    a("v_sub_u32 %s, %s, %s" % (vr(h), vr(P), vr(t)))
    a("v_mul_u32_u24 %s, 38, %s" % (vr(kh), vr(h)))
    a("v_lshrrev_b32 %s, 10, %s" % (vr(kh), vr(kh)))
    a("v_mul_u32_u24 %s, 27, %s" % (vr(t), vr(kh)))
    a("v_sub_u32 %s, %s, %s" % (vr(h), vr(h), vr(t)))
    a("v_cmp_ne_u32 %s, 13, %s" % (zmask, vr(h)))
    a("v_add_u32 %s, 2, %s" % (vr(t), vr(h)))
    a("v_lshrrev_b32 %s, 4, %s" % (vr(t), vr(t)))
    a("v_mul_u32_u24 %s, 14, %s" % (vr(t2), vr(t)))
    a("v_sub_u32 %s, %s, %s" % (vr(h), vr(h), vr(t2)))
    a("v_min_u32 %s, 12, %s" % (vr(h), vr(h)))
    a("v_lshrrev_b32 %s, 1, %s" % (vr(t2), vr(h)))
    a("v_xor_b32 %s, %s, %s" % (vr(t2), vr(t2), vr(h)))
    a("v_bfe_u32 %s, %s, 2, 1" % (vr(t2), vr(t2)))
    a("v_xor_b32 %s, %s, %s" % (vr(t), vr(t), vr(t2)))
    a("v_mad_u32_u24 %s, %s, 13, %s" % (vr(h), vr(t), vr(h)))

def feat_idx(a, r, kh, sa, tb0, tb1, dl, t):
    a("v_mul_u32_u24 %s, 79, %s" % (vr(dl), vr(r)))
    a("v_lshrrev_b32 %s, 10, %s" % (vr(dl), vr(dl)))
    a("v_mul_u32_u24 %s, 13, %s" % (vr(t), vr(dl)))
    a("v_sub_u32 %s, %s, %s" % (vr(sa), vr(r), vr(t)))
    a("v_add_u32 %s, %s, %s" % (vr(tb0), vr(sa), vr(dl)))
    a("v_subrev_u32 %s, 13, %s" % (vr(t), vr(tb0)))
    a("v_min_u32 %s, %s, %s" % (vr(tb0), vr(tb0), vr(t)))
    a("v_lshlrev_b32 %s, 1, %s" % (vr(sa), vr(sa)))
    a("v_lshl_add_u32 %s, %s, 1, %s" % (vr(tb0), vr(tb0), vr(kh)))
    a("v_xor_b32 %s, 1, %s" % (vr(tb1), vr(tb0)))
    a("v_min_u32 %s, 1, %s" % (vr(dl), vr(dl)))
    a("v_xor_b32 %s, 1, %s" % (vr(dl), vr(dl)))

def signal(a, s_cnt_off, inc, shift, s_last, s_flag_off, t0, t1, srdreg=16):
    lb = newlab("sg")
    srd(a, srdreg, "dbg")
    a("v_mov_b32 %s, 0x%x" % (vr(t0), inc))
    a("v_mov_b32 %s, s%d" % (vr(t1), s_cnt_off))
    a("s_mov_b64 exec, 1")
    a("buffer_atomic_add %s, %s, s[%d:%d], 0 offen sc0 sc1" % (vr(t0), vr(t1), srdreg, srdreg + 3))
    a("s_waitcnt vmcnt(0)")
    a("v_readfirstlane_b32 s61, %s" % vr(t0))
    a("s_bfe_u32 s61, s61, 0x%x" % (0x80000 | shift))
    a("s_cmp_lg_u32 s61, %s" % s_last)
    a("s_cbranch_scc1 %s" % lb)
    a("v_mov_b32 %s, 1" % vr(t0))
    a("v_mov_b32 %s, s%d" % (vr(t1), s_flag_off))
    a("buffer_store_byte %s, %s, s[%d:%d], 0 offen sc0 sc1" % (vr(t0), vr(t1), srdreg, srdreg + 3))
    a.label(lb)
    a("s_mov_b64 exec, -1")

def lane_piece(a, kh, h, vJ, t, t2, t3, zmask, vbig):
    piece(a, 1, t3, kh, h, t, t2, zmask)
    a("v_cmp_gt_u32 vcc, 54, v1")
    a("s_and_b64 %s, %s, vcc" % (zmask, zmask))
    a("v_mul_u32_u24 %s, 1352, %s" % (vr(h), vr(h)))
    a("v_mul_u32_u24 %s, 676, %s" % (vr(t), vr(kh)))
    a("v_add_u32 %s, %s, %s" % (vr(vJ), vr(h), vr(t)))
    a("v_cndmask_b32 %s, %s, %s, %s" % (vr(vJ), vr(vbig), vr(vJ), zmask))

def prep(a, vC, vOne):
    srd(a, 8, "wcin")
    srd(a, 12, "ws", size=IMG)
    a("v_mov_b32 v9, %s" % BIG)
    a("v_mov_b32 v8, 0")
    a("s_cmp_lt_u32 s62, %d" % NPREP)
    a("s_cbranch_scc1 L_prep_go")
    a("s_barrier")
    a("s_branch L_prep_done")
    a.label("L_prep_go")
    a("s_setprio 3")
    a("s_cmp_ge_u32 s62, 3")
    a("s_cbranch_scc1 L_prep_c")
    a("s_add_u32 s16, s62, 1")
    a("s_mul_i32 s16, s16, 35152")
    a("v_lshlrev_b32 v20, 4, v1")
    a("s_lshl_b32 s17, s3, 10")
    for k in range(9):
        a("s_add_u32 s18, s17, %d" % (4096 * k))
        a("s_add_u32 m0, s18, 1024")
        a("s_add_u32 s18, s18, s16")
        a("buffer_load_dwordx4 v20, s[8:11], s18 offen lds")
    lane_piece(a, 12, 13, 10, 14, 15, 11, "s[18:19]", 8)
    a("s_lshl_b32 s17, s3, 4")
    a("s_add_u32 s17, s17, 1024")
    a("v_add_u32 v10, s17, v10")
    a("s_barrier")
    stamp(a)
    a("s_waitcnt vmcnt(0)")
    stamp(a)
    arrive(a, vC, vOne, CD)
    wait_lds(a, vC, 2, CD, 4, sleep=0)
    stamp(a)
    D = 32
    for k in range(11):
        a("ds_read2_b32 %s, v10 offset0:%d offset1:%d" % (vr(D + 4 * k, 2), 16 * k, 16 * k + 1))
        a("ds_read2_b32 %s, v10 offset0:%d offset1:%d" % (vr(D + 4 * k + 2, 2), 16 * k + 2, 16 * k + 3))
    a("s_cmp_lt_u32 s3, 2")
    a("s_cselect_b32 s17, -1, 0")
    a("s_cmp_lt_u32 s3, 3")
    a("s_cselect_b32 s20, -1, 0")
    a("s_waitcnt lgkmcnt(0)")
    a("v_and_b32 v%d, s20, v%d" % (D + 40, D + 40))
    for k in (1, 2, 3):
        a("v_and_b32 v%d, s17, v%d" % (D + 40 + k, D + 40 + k))
    pk_absmax(a, 15, list(range(D, D + 44)), 14)
    max_publish(a, 15, 14, 8, 3, 0)
    a("s_waitcnt lgkmcnt(0)")
    arrive(a, vC, vOne, CD)
    wait_lds(a, vC, 2, CD, 8, sleep=0)
    stamp(a)
    a("ds_read_b128 v[16:19], v8")
    a("s_waitcnt lgkmcnt(0)")
    max_fold(a, 17, 16, 4)
    w_scale(a, 17, 20)
    a("v_mov_b32 v21, s20")
    a("v_cndmask_b32 v21, 0, v21, s[18:19]")
    a("v_cmp_gt_u32 vcc, 54, v1")
    a("v_cndmask_b32 v10, v9, v20, vcc")
    a("s_mul_i32 s19, s62, %d" % (43 * FRAG))
    a("s_mul_i32 s18, s3, %d" % FRAG)
    a("s_add_u32 s19, s19, s18")
    for k in range(11):
        w_convert(a, list(range(D + 4 * k, D + 4 * k + 4)), "v21", 16)
        a("s_add_u32 s20, s19, %d" % (HDR + L_F * FRAG + 4 * FRAG * k))
        if k == 10:
            a("s_cmp_lt_u32 s3, 3")
            a("s_cselect_b32 s20, s20, 0x40000000")
        a("buffer_store_dwordx4 %s, v10, s[12:15], s20 offen%s" % (vr(D + 4 * k, 4), SC))
    a("s_lshl_b32 s20, s62, 3")
    a("s_add_u32 s20, s20, %d" % P1_OFF)
    a("s_cmp_eq_u32 s62, 2")
    a("s_cselect_b32 s20, %d, s20" % (HDR2 + 8))
    a("v_mov_b32 v16, s17")
    a("v_mov_b32 v17, 0")
    a("v_mov_b32 v12, s20")
    a("s_mov_b64 exec, 1")
    a("buffer_store_dwordx2 v[16:17], v12, s[12:15], 0 offen%s" % SC)
    a("s_mov_b64 exec, -1")
    stamp(a)
    a("s_waitcnt vmcnt(0)")
    stamp(a)
    arrive(a, vC, vOne, CD)
    a("s_cmp_lg_u32 s3, 0")
    a("s_cbranch_scc1 L_prep_done")
    wait_lds(a, vC, 2, CD, 12, sleep=0)
    a("s_cmp_eq_u32 s62, 2")
    a("s_cbranch_scc1 L_prep_sig")
    srd(a, 16, "dbg")
    a("v_mov_b32 v12, s62")
    a("s_mov_b64 exec, 1")
    a("buffer_store_byte v%d, v12, s[16:19], 0 offen sc0 sc1" % vOne)
    a("s_mov_b64 exec, -1")
    a("s_branch L_prep_done")
    a.label("L_prep_c"); a.reset_hist()
    a("s_load_dwordx16 s[20:35], s[%d:%d], 208" % (kp("wout"), kp("wout") + 1))
    a("s_load_dwordx8 s[36:43], s[%d:%d], 272" % (kp("wout"), kp("wout") + 1))
    a("s_load_dwordx2 s[44:45], s[%d:%d], 304" % (kp("wout"), kp("wout") + 1))
    a("s_sub_u32 s16, s62, 3")
    a("s_barrier")
    a("v_lshlrev_b32 v10, 3, v0")
    a("v_cmp_gt_u32 vcc, 169, v0")
    a("v_cndmask_b32 v10, v9, v10, vcc")
    for hp in range(26):
        a("s_mov_b32 s17, %d" % (5 * 35152 + hp * 1352))
        a("buffer_load_dwordx2 %s, v10, s[8:11], s17 offen" % vr(32 + 2 * hp, 2))
    a("v_lshlrev_b32 v11, 4, v0")
    SCN = 84
    for it in range(9):
        a("s_mov_b32 s17, %d" % (4 * 35152 + 4096 * it))
        if it == 8:
            a("v_cmp_gt_u32 vcc, %d, v11" % (35152 - 32768))
            a("v_cndmask_b32 v11, v9, v11, vcc")
        a("buffer_load_dwordx4 %s, v11, s[8:11], s17 offen" % vr(SCN + 4 * it, 4))
    a("v_and_b32 v12, 31, v1")
    a("v_lshrrev_b32 v13, 5, v1")
    a("v_mul_u32_u24 v15, 1352, v13")
    a("v_lshl_add_u32 v15, v12, 1, v15")
    a("v_cmp_gt_u32 vcc, 26, v12")
    a("v_cndmask_b32 v15, v9, v15, vcc")
    a("s_mul_i32 s18, s16, 52")
    a("s_add_u32 s18, s18, %d" % (4 * 35152))
    PR, MR = 120, 136
    for st in range(13):
        a("v_mov_b32 v%d, 0" % (PR + st))
    for st in range(13):
        a("s_add_u32 s17, s18, %d" % (st * 2704))
        a("buffer_load_short_d16_hi v%d, v15, s[8:11], s17 offen" % (PR + st))
    a("v_lshlrev_b32 v21, 7, v13")
    a("v_lshl_add_u32 v21, v12, 2, v21")
    for hf in range(2):
        a("v_lshl_add_u32 v14, v0, 1, %d" % hf)
        a("v_mul_u32_u24 v16, 5042, v14")
        a("v_lshrrev_b32 v16, 16, v16")
        a("v_mul_u32_u24 v17, 13, v16")
        a("v_sub_u32 v17, v14, v17")
        a("v_lshlrev_b32 v%d, 7, v16" % (19 + hf))
        a("v_lshl_add_u32 v%d, v17, 3, v%d" % (19 + hf, 19 + hf))
    a("v_mov_b32 v30, 0")
    a("s_waitcnt lgkmcnt(0)")
    for h in range(26):
        sw = 20 + h // 2
        a(("s_and_b32 s17, s%d, 0xffff0000" % sw) if h & 1 else ("s_lshl_b32 s17, s%d, 16" % sw))
        a("v_writelane_b32 v30, s17, %d" % h)
    a("v_lshlrev_b32 v31, 7, v1")
    a("v_cmp_gt_u32 vcc, 26, v0")
    a("s_and_saveexec_b64 s[6:7], vcc")
    a("ds_write_b32 v31, v30 offset:%d" % (1024 + 104))
    a("s_mov_b64 exec, s[6:7]")
    a("v_and_b32 v26, 0x7fffffff, v30")
    wave_max_u32(a, 26)
    a("v_readlane_b32 s46, v26, 63")
    a("s_waitcnt vmcnt(22)")
    for hp in range(26):
        sw = 33 + hp // 2
        a(("s_and_b32 s17, s%d, 0xffff0000" % sw) if hp & 1 else ("s_lshl_b32 s17, s%d, 16" % sw))
        for d in range(2):
            a("v_lshlrev_b32 v%d, 16, v%d" % (14 + 2 * d, 32 + 2 * hp + d))
            a("v_and_b32 v%d, 0xffff0000, v%d" % (15 + 2 * d, 32 + 2 * hp + d))
        for e in range(4):
            a(("v_mul_f32 v%d, s17, v%d" if hp == 0 else "v_fmac_f32 v%d, s17, v%d") % (22 + e, 14 + e))
    a("v_cmp_gt_u32 vcc, 169, v0")
    a("s_and_saveexec_b64 s[6:7], vcc")
    a("ds_write_b64 v19, v[22:23] offset:1024")
    a("ds_write_b64 v20, v[24:25] offset:1024")
    a("s_mov_b64 exec, s[6:7]")
    a("v_max3_f32 v22, |v22|, |v23|, |v24|")
    a("v_max_f32 v22, v22, |v25|")
    max_publish(a, 22, 18, 8, 3, 0)
    a("s_waitcnt vmcnt(13)")
    pk_absmax(a, 22, list(range(SCN, SCN + 36)), 18)
    max_publish(a, 22, 18, 8, 3, 16)
    a("s_waitcnt vmcnt(0) lgkmcnt(0)")
    arrive(a, vC, vOne, CD)
    a("s_cmp_lg_u32 s3, 0")
    a("s_cbranch_scc1 L_prep_done")
    wait_lds(a, vC, 2, CD, 4)
    for st in range(13):
        a("ds_read_b32 v%d, v21 offset:%d" % (MR + st, 1024 + 256 * st))
    a("ds_read_b128 v[16:19], v8")
    a("ds_read_b128 v[24:27], v8 offset:16")
    a("s_waitcnt lgkmcnt(0)")
    max_fold(a, 17, 16, 4)
    max_fold(a, 18, 24, 4)
    a("s_lshr_b32 s17, s17, 23")
    a("s_lshr_b32 s18, s18, 7")
    a("s_lshr_b32 s46, s46, 23")
    a("s_add_u32 s17, s17, s18")
    a("s_sub_i32 s17, %d, s17" % (9 + 252))
    a("s_add_u32 s46, s46, s18")
    a("s_sub_i32 s46, %d, s46" % (10 + 252))
    for st in range(13):
        a("v_mfma_f32_32x32x2_f32 v[32:47], v%d, v%d, %s" % (PR + st, MR + st, "0" if st == 0 else "v[32:47]"))
        a("v_mfma_f32_32x32x2_f32 v[32:47], v%d, v%d, v[32:47]" % (MR + st, PR + st))
    a("v_lshrrev_b32 v11, 1, v1")
    a("v_and_b32 v12, 1, v1")
    a("v_cmp_lt_u32 s[18:19], 22, v11")
    a("v_mov_b32 v14, s46")
    for q in range(4):
        a("v_lshl_add_u32 v15, v11, 2, %d" % q)
        a("v_min_u32 v15, 90, v15")
        feat_idx(a, 15, 12, 16, 17, 18, 76 + q, 19)
        for b in range(2):
            if b: a("v_add_u32 v16, 1, v16")
            a("v_lshlrev_b32 v19, 7, v16")
            a("v_lshl_add_u32 v%d, v%d, 2, v19" % (60 + 2 * q + b, 17 + b))
        a("v_sub_u32 v%d, s17, v%d" % (76 + q, 76 + q))
        a("v_cndmask_b32 v%d, v%d, v14, s[18:19]" % (76 + q, 76 + q))
    a("v_subrev_u32 v15, 23, v11")
    a("v_lshlrev_b32 v15, 3, v15")
    a("v_mad_u32_u24 v15, v12, 14, v15")
    a("v_lshlrev_b32 v15, 7, v15")
    for e in range(8):
        a("v_add_u32 v16, %d, v15" % (128 * e + 104))
        a("v_and_b32 v16, 0xfff, v16")
        a("v_cndmask_b32 v%d, v%d, v16, s[18:19]" % (60 + e, 60 + e))
    a("s_cmp_ge_u32 s16, 13")
    a("s_cselect_b32 s20, 1, 0")
    a("s_mul_i32 s21, s20, 13")
    a("s_sub_u32 s21, s16, s21")
    a("s_lshr_b32 s22, s21, 1")
    a("s_xor_b32 s22, s22, s21")
    a("s_bfe_u32 s22, s22, 0x10002")
    a("s_xor_b32 s20, s20, s22")
    a("s_mul_i32 s20, s20, 14")
    a("s_add_u32 s21, s21, s20")
    a("s_lshl_b32 s21, s21, 4")
    a("s_add_u32 s21, s21, %d" % (HDR + Q1_F * FRAG))
    a("v_and_b32 v20, 31, v1")
    a("v_lshlrev_b32 v20, 2, v20")
    a("v_lshl_add_u32 v20, v13, 9, v20")
    for v in range(16):
        a("ds_write_b32 v20, v%d offset:%d" % (32 + v, 8192 + 128 * (8 * (v >> 2) + (v & 3))))
    a("s_waitcnt lgkmcnt(0)")
    for e in range(8):
        a("ds_read_b32 v%d, v%d offset:8192" % (48 + e, 60 + e))
    a("s_waitcnt lgkmcnt(0)")
    for e in range(8):
        a("v_ldexp_f32 v%d, v%d, v%d" % (48 + e, 48 + e, 76 + e // 2))
    for q in range(4):
        a("v_cvt_pk_f16_f32 v%d, v%d, v%d" % (32 + q, 48 + 2 * q, 49 + 2 * q))
    a("v_cmp_ne_u32 vcc, 22, v11")
    a("v_cndmask_b32 v35, 0, v35, vcc")
    a("v_cmp_ne_u32 vcc, 24, v11")
    a("v_cndmask_b32 v35, 0, v35, vcc")
    a("v_cmp_ne_u32 vcc, 49, v1")
    a("v_cndmask_b32 v34, 0, v34, vcc")
    a("v_mul_u32_u24 v10, 432, v1")
    a("v_cmp_gt_u32 vcc, 50, v1")
    a("v_cndmask_b32 v10, v9, v10, vcc")
    a("buffer_store_dwordx4 v[32:35], v10, s[12:15], s21 offen%s" % SC)
    a("s_cmp_lg_u32 s16, 0")
    a("s_cbranch_scc1 L_prep_sig0")
    for q in range(4): a("v_mov_b32 v%d, 0" % (36 + q))
    a("s_mov_b32 s21, %d" % (HDR + Q1_F * FRAG + 13 * 16))
    a("buffer_store_dwordx4 v[36:39], v10, s[12:15], s21 offen%s" % SC)
    a("v_mov_b32 v40, s17")
    a("v_mov_b32 v41, s46")
    a("v_mov_b32 v12, %d" % HDR2)
    a("s_mov_b64 exec, 1")
    a("buffer_store_dwordx2 v[40:41], v12, s[12:15], 0 offen%s" % SC)
    a("s_mov_b64 exec, -1")
    a.label("L_prep_sig0"); a.reset_hist()
    a("s_waitcnt vmcnt(0)")
    a.label("L_prep_sig"); a.reset_hist()
    a("s_mov_b32 s20, 128")
    a("s_mov_b32 s22, 2")
    signal(a, 20, 0x100, 8, "26", 22, 12, 13)
    a.label("L_prep_done"); a.reset_hist()
    a("s_setprio 0")

def poll_flag(a, vt, voff, srdreg, op, target, sleep):
    l = newlab("p"); d = newlab("d")
    a("s_mov_b32 s60, %d" % SPIN)
    a.label(l)
    a("%s %s, v%d, s[%d:%d], 0 offen sc0 sc1" % (op, vr(vt), voff, srdreg, srdreg + 3))
    a("s_waitcnt vmcnt(0)")
    a("v_readfirstlane_b32 s61, v%d" % vt)
    a("s_cmp_eq_u32 s61, 0x%x" % target)
    a("s_cbranch_scc1 %s" % d)
    a("s_sub_u32 s60, s60, 1")
    a("s_cbranch_scc1 %s" % d)
    a("s_sleep %d" % sleep)
    a("s_branch %s" % l)
    a.label(d)

def part2_load(a, vC, vOne, first_sleep=0):
    srd(a, 16, "dbg")
    srd(a, 20, "ws", size=IMG - P2_OFF, off=P2_OFF)
    a("v_mov_b32 v4, 0")
    l1 = newlab("q"); l2 = newlab("q")
    a("s_cmp_lg_u32 s34, 0")
    a("s_cbranch_scc1 %s" % l1)
    if first_sleep: wait_lds(a, vC, 2, C6, 1, sleep=8)
    poll_flag(a, 2, 4, 16, "buffer_load_dword", 0x010101, 16)
    arrive(a, vC, vOne, C5)
    a("s_branch %s" % l2)
    a.label(l1)
    wait_lds(a, vC, 2, C5, 1, sleep=2)
    a.label(l2)
    a("v_lshlrev_b32 v4, 4, v1")
    a("s_lshl_b32 s30, s34, 10")
    for k in range(15):
        a("s_add_u32 m0, s30, %d" % (4096 * k))
        a("s_add_u32 s29, s30, %d" % (4096 * k))
        a("buffer_load_dwordx4 v4, s[20:23], s29 offen%s lds" % SC)
    a("s_waitcnt vmcnt(0)")
    arrive(a, vC, vOne, C4)

RING, DEPTH = 4, 3
def dnn(a):
    vC, vOne = 28, 29
    a("v_mov_b32 v%d, %d" % (vC, L_CNT))
    a("v_mov_b32 v%d, 1" % vOne)
    a("s_cmp_lg_u32 s5, 0")
    a("s_cbranch_scc1 L_dnn_go")
    prep(a, vC, vOne)
    a("s_mov_b32 s34, s3")
    stamp(a)
    st0 = _st[0]
    part2_load(a, vC, vOne, first_sleep=100)
    stamp_flush(a)
    _st[0] = 2
    a("s_endpgm")
    a.label("L_dnn_go"); a.reset_hist()
    a("s_mov_b32 s34, s3")
    srd(a, 8, "table"); srd(a, 12, "w1"); srd(a, 16, "idx"); srd(a, 20, "b1"); srd(a, 24, "w2")
    IDX = 160
    IDXB = [10, 158]
    a("s_lshl_b32 s28, s4, 7")
    a("s_lshl_b32 s29, s34, 5")
    a("s_add_u32 s28, s28, s29")
    a("v_lshrrev_b32 v3, 2, v1")
    a("v_add_u32 v3, s28, v3")
    a("v_mul_u32_u24 v3, 104, v3")
    a("v_and_b32 v8, 3, v1")
    a("v_lshl_add_u32 v3, v8, 5, v3")
    a("s_barrier")
    for h in range(2):
        for t in range(2):
            a("buffer_load_dwordx4 %s, v3, s[16:19], 0 offen offset:%d" % (vr(IDXB[h] + 4 * t, 4), 16 * 104 * h + 16 * t))
    a("s_sub_u32 s35, s5, 1")
    a("v_and_b32 v4, 127, v0")
    a("v_lshlrev_b32 v4, 1, v4")
    a("s_lshl_b32 s29, s35, 8")
    a("v_mov_b32 v18, 0")
    a("v_mov_b32 v19, 0")
    a("buffer_load_short_d16_hi v18, v4, s[20:23], s29 offen")
    a("buffer_load_short_d16_hi v19, v4, s[24:27], s29 offen")
    a("v_lshrrev_b32 v6, 4, v1")
    a("v_bfe_u32 v7, v1, 2, 2")
    a("v_xor_b32 v7, v7, v6")
    a("v_lshlrev_b32 v7, 6, v7")
    a("v_lshl_add_u32 v7, v8, 4, v7")
    a("v_xor_b32 v9, v6, v8")
    a("v_lshlrev_b32 v9, 4, v9")
    a("s_lshl_b32 s30, s34, 3")
    a("v_add_u32 v6, s30, v6")
    a("v_mul_u32_u24 v6, 1664, v6")
    a("v_add3_u32 v6, v6, v7, s29")
    a("s_lshl_b32 s31, s34, 11")
    def dma_w(t):
        for h in range(2):
            a("s_add_u32 m0, s31, %d" % ((t % RING) * 16384 + 8192 + 1024 * h))
            a("s_mov_b32 s30, %d" % ((t * 32 + 4 * h) * 1664))
            a("buffer_load_dwordx4 v6, s[12:15], s30 offen lds")
    def dma_x(t):
        for h in range(2):
            q = t >> 3
            a("v_add_u32_dpp v5, v%d, v9 quad_perm:[%d,%d,%d,%d] row_mask:0xf bank_mask:0xf" % (IDXB[h] + (t & 7), q, q, q, q))
            a("s_add_u32 m0, s31, %d" % ((t % RING) * 16384 + 1024 * h))
            a("buffer_load_dwordx4 v5, s[8:11], 0 offen lds")
    for t in range(DEPTH): dma_w(t)
    a("s_and_b32 s32, s34, 1")
    a("s_lshr_b32 s33, s34, 1")
    a("v_and_b32 v2, 31, v1")
    a("v_lshrrev_b32 v3, 5, v1")
    a("v_bfe_u32 v7, v1, 2, 2")
    a("v_xor_b32 v24, v7, v3")
    a("v_lshlrev_b32 v24, 4, v24")
    a("v_lshl_add_u32 v24, v2, 6, v24")
    a("s_lshl_b32 s30, s32, 12")
    a("v_add_u32 v24, s30, v24")
    a("v_xor_b32 v25, 32, v24")
    a("s_lshl_b32 s30, s33, 1")
    a("v_xor_b32 v26, s30, v7")
    a("v_lshlrev_b32 v26, 6, v26")
    a("v_lshl_add_u32 v26, v7, 8, v26")
    a("v_lshl_add_u32 v26, v3, 11, v26")
    a("v_bfe_u32 v2, v1, 4, 1")
    a("v_lshl_add_u32 v26, v2, 5, v26")
    a("v_lshl_add_u32 v26, v8, 3, v26")
    a("v_xor_b32 v27, 64, v26")
    a("s_lshl_b32 s30, s33, 8")
    a("s_add_u32 s30, s30, %d" % L_DTAB)
    a("v_lshl_add_u32 v7, v3, 4, s30")
    a("s_waitcnt vmcnt(%d)" % (2 * DEPTH))
    stamp(a)
    for h in range(2):
        for k in range(8):
            a("v_lshlrev_b32 v%d, 6, v%d" % (IDXB[h] + k, IDXB[h] + k))
    if OPT.get("xdelay", 8): wait_lds(a, vC, 2, (CX, S1, S3)[OPT.get("xcnt", 0)], OPT.get("xdelay", 8), sleep=2)
    a("s_setprio 3")
    for t in range(DEPTH): dma_x(t)
    a("v_and_b32 v4, 255, v0")
    a("v_cmp_gt_u32 vcc, 128, v4")
    a("v_lshlrev_b32 v4, 2, v4")
    a("v_add_u32 v4, %d, v4" % L_DTAB)
    a("v_cndmask_b32 v18, v19, v18, vcc")
    a("ds_write_b32 v4, v18")
    ACC = 30
    FR = 94
    def mf(s, st):
        b = FR + 32 * (s % 2)
        for tl in range(2):
            for mt in range(2):
                ac = vr(ACC + 32 * tl + 16 * mt, 16)
                a("v_mfma_f32_32x32x16_bf16 %s, %s, %s, %s" % (ac, vr(b + 16 + 8 * tl + 4 * st, 4), vr(b + 8 * mt + 4 * st, 4), ac))
    def vm(s):
        return 2 * (DEPTH - 1 - s) + 4 * min(s, 26 - DEPTH) if s < DEPTH else 4 * (min(s + DEPTH - 1, 25) - s)
    a("s_waitcnt vmcnt(%d) lgkmcnt(0)" % vm(0))
    arrive(a, vC, vOne, CD)
    for s in range(26):
        wait_lds(a, vC, 2, CD, 4 * (s + 1), sleep=0)
        if s in (0, 5, 10, 15, 20, 25): stamp(a)
        if s == 0:
            for tl in range(2):
                for mt in range(2):
                    for g in range(4):
                        a("ds_read_b128 %s, v7 offset:%d" % (vr(ACC + 32 * tl + 16 * mt + 4 * g, 4), 128 * tl + 32 * g))
        so = (s % RING) * 16384
        b = FR + 32 * (s % 2)
        for st in range(2):
            for mt in range(2):
                a("ds_read_b128 %s, v%d offset:%d" % (vr(b + 8 * mt + 4 * st, 4), 24 + st, so + 2048 * mt))
            for tl in range(2):
                for t in range(2):
                    a("ds_read_b64_tr_b16 %s, v%d offset:%d" % (vr(b + 16 + 8 * tl + 4 * st + 2 * t, 2), 26 + tl, so + 8192 + st * 4096 + t * 1024))
        if s + DEPTH < 26:
            dma_x(s + DEPTH); dma_w(s + DEPTH)
        if s > 0: mf(s - 1, 0)
        a("s_waitcnt vmcnt(%d) lgkmcnt(0)" % (vm(s + 1) if s < 25 else 0))
        arrive(a, vC, vOne, CD)
        if s > 0: mf(s - 1, 1)
    mf(25, 0); mf(25, 1)
    wait_lds(a, vC, 2, CD, 4 * 27, sleep=0)
    stamp(a)
    part2_load(a, vC, vOne)
    stamp(a)
    a("s_setprio %d" % OPT.get("geluprio", 1))
    W2 = 94
    a("v_mov_b32 v8, %s" % fbits(-2.302208198144325))
    a("s_mov_b32 s30, %s" % fbits(-0.10294323958002470))
    for tl in range(2):
        for g in range(4):
            a("ds_read_b128 %s, v7 offset:%d" % (vr(W2 + 16 * tl + 4 * g, 4), 512 + 128 * tl + 32 * g))
    a("s_waitcnt lgkmcnt(0)")
    G = 4
    first = {}
    for tl in range(2):
        for mt in range(2):
            for k0 in range(0, 16, G):
                ks = range(k0, k0 + G)
                A_ = lambda k: ACC + 32 * tl + 16 * mt + k
                T = lambda k: 10 + (k % G)
                for k in ks: a("v_mul_f32 v%d, v%d, v%d" % (T(k), A_(k), A_(k)))
                for k in ks: a("v_fma_f32 v%d, v%d, s30, v8" % (T(k), T(k)))
                for k in ks: a("v_mul_f32 v%d, v%d, v%d" % (T(k), T(k), A_(k)))
                for k in ks: a("v_exp_f32 v%d, v%d" % (T(k), T(k)))
                for k in ks: a("v_mul_f32 v%d, v%d, v%d" % (A_(k), A_(k), W2 + 16 * tl + k))
                for k in ks: a("v_add_f32 v%d, 1.0, v%d" % (T(k), T(k)))
                for k in ks: a("v_rcp_f32 v%d, v%d" % (T(k), T(k)))
                for k in ks:
                    p = 16 + 2 * mt + (k & 1)
                    if p not in first:
                        first[p] = 1
                        a("v_mul_f32 v%d, v%d, v%d" % (p, A_(k), T(k)))
                    else:
                        a("v_fmac_f32 v%d, v%d, v%d" % (p, A_(k), T(k)))
    a("v_add_f32 v16, v16, v17")
    a("v_add_f32 v18, v18, v19")
    a("v_permlane32_swap_b32 v16, v18")
    a("v_add_f32 v16, v16, v18")
    srd(a, 20, "ws", size=32 * 14 * 512, off=WS_PART)
    a("s_mul_i32 s28, s4, 7")
    a("s_add_u32 s28, s28, s35")
    a("s_lshl_b32 s28, s28, 1")
    a("s_add_u32 s28, s28, s33")
    a("s_lshl_b32 s28, s28, 9")
    a("s_lshl_b32 s29, s32, 8")
    a("s_add_u32 s28, s28, s29")
    a("v_lshlrev_b32 v4, 2, v1")
    a("buffer_store_dword v16, v4, s[20:23], s28 offen%s" % SC)
    a("s_waitcnt vmcnt(0)")
    a("s_mov_b64 exec, 1")
    a("ds_add_rtn_u32 v2, v%d, v%d offset:%d" % (vC, vOne, CP))
    a("s_mov_b64 exec, -1")
    a("s_waitcnt lgkmcnt(0)")
    a("v_readfirstlane_b32 s28, v2")
    a("s_cmp_lg_u32 s28, 3")
    a("s_cbranch_scc1 L_dnn_end")
    a("s_lshl_b32 s28, s4, 2")
    a("s_add_u32 s28, s28, 128")
    a("s_add_u32 s29, s4, 8")
    signal(a, 28, 1, 0, "6", 29, 2, 3)
    a.label("L_dnn_end"); a.reset_hist()
    stamp_flush(a)
    a("s_endpgm")

def cin(a):
    vOne, vRot, vA, vW, vC, vT = 0, 2, 4, 5, 6, 7
    vE = [8, 9]; vNX = [10, 11]; vS = [12, 13]; TS = [(14, 15, 16), (17, 18, 19)]
    X = [20, 33]; vP = 46; vB = 48; vF = 49
    Z = [52, 56]; AF = 60; ACC = [76, 92]; Y = [108, 121]; ACG = [134, 150]; WC = 134; U = [108, 115]; FL = [108, 116]
    XB = [52, 66]; XA = 80
    W0R = 100
    a("s_sub_u32 s35, s3, 4")
    srd(a, 16, "idx")
    a("s_lshl_b32 s6, s4, 7")
    a("s_lshl_b32 s7, s5, 4")
    a("s_add_u32 s6, s6, s7")
    a("s_lshl_b32 s7, s35, 1")
    a("s_add_u32 s36, s6, s7")
    a("s_mul_i32 s7, s36, 104")
    a("v_and_b32 v3, 60, v1")
    for q in range(3):
        a("buffer_load_dword v%d, v3, s[16:19], s7 offen offset:%d" % (46 + q, 64 * q))
    a("v_min_u32 v3, 12, v3")
    a("buffer_load_dword v49, v3, s[16:19], s7 offen offset:192")
    srd(a, 12, "wcin", size=35152)
    a("v_subrev_u32 v0, 256, v0")
    a("v_lshlrev_b32 v24, 4, v0")
    for k in range(5):
        a("s_mov_b32 s41, %d" % (8192 * k))
        a("buffer_load_dwordx4 %s, v24, s[12:15], s41 offen" % vr(W0R + 4 * k, 4))
    srd(a, 20, "wout")
    a("v_mov_b32 v9, %s" % BIG)
    a("v_and_b32 v14, 15, v0")
    a("v_lshrrev_b32 v15, 4, v0")
    a("v_mad_u32_u24 v15, v15, 13, v14")
    a("v_lshlrev_b32 v15, 1, v15")
    a("v_cmp_gt_u32 vcc, 13, v14")
    a("v_cndmask_b32 v15, v9, v15, vcc")
    a("v_mov_b32 v50, 0")
    a("buffer_load_short_d16_hi v50, v15, s[20:23], 0 offen")
    a("v_mov_b32 v%d, %d" % (vC, L_CNT))
    a("v_mov_b32 v3, 0")
    a("v_lshl_add_u32 v7, v1, 2, v%d" % vC)
    a("v_cmp_gt_u32 vcc, 16, v0")
    a("s_and_saveexec_b64 s[6:7], vcc")
    a("ds_write_b32 v7, v3")
    a("s_mov_b64 exec, s[6:7]")
    srd(a, 8, "table")
    a("s_lshl_b32 s37, s35, 12")
    a("s_add_u32 s37, s37, %d" % L_XS)
    a("v_and_b32 v25, 3, v1")
    a("v_lshlrev_b32 v25, 4, v25")
    a("s_waitcnt lgkmcnt(0)")
    a("s_barrier")
    lane_piece(a, 12, 13, 10, 14, 15, 11, "s[50:51]", 9)
    a("v_add_u32 v13, %d, v13" % L_P1)
    a("v_add_u32 v11, 512, v13")
    a("v_add_u32 v24, %d, v24" % L_P1)
    a("v_mul_u32_u24 v14, 0x0202, v12")
    a("v_lshlrev_b32 v14, 16, v14")
    a("v_add_u32 v20, 0x01000c0c, v14")
    a("v_sub_u32 v21, 0x03020c0c, v14")
    a("v_lshlrev_b32 v14, 1, v14")
    a("v_add_u32 v22, 0x01000c0c, v14")
    a("v_sub_u32 v23, 0x07060c0c, v14")
    a("s_waitcnt vmcnt(6)")
    stamp(a)
    for q in range(4):
        a("v_lshl_add_u32 v%d, v%d, 6, v25" % (46 + q, 46 + q))
        a("s_add_u32 m0, s37, %d" % (1024 * q))
        a("buffer_load_dwordx4 v%d, s[8:11], 0 offen lds" % (46 + q))
    a("v_lshlrev_b32 v18, 2, v0")
    a("v_add_u32 v18, %d, v18" % L_WTAB)
    a("v_cmp_gt_u32 vcc, 128, v0")
    a("v_cmp_gt_u32 s[52:53], %d, v1" % 64) if False else None
    a("v_mov_b32 v%d, 1" % vOne)
    a("s_waitcnt vmcnt(4)")
    for k in range(4):
        a("ds_write_b128 v24, %s offset:%d" % (vr(W0R + 4 * k, 4), 8192 * k))
    lb = newlab("nw")
    a("s_cmp_ge_u32 s35, 3")
    a("s_cbranch_scc1 %s" % lb)
    a("ds_write_b128 v24, %s offset:%d" % (vr(W0R + 16, 4), 8192 * 4))
    a.label(lb)
    a("s_and_saveexec_b64 s[6:7], vcc")
    a("ds_write_b32 v18, v50")
    a("s_mov_b64 exec, s[6:7]")
    pk_absmax(a, 15, list(range(W0R, W0R + 20)), 14)
    max_publish(a, 15, 14, vC, 35, MX)
    a("s_waitcnt lgkmcnt(0)")
    arrive(a, vC, vOne, S1)
    stamp(a)
    a("v_bfe_u32 v15, v1, 2, 2")
    a("v_lshlrev_b32 v15, 6, v15")
    a("v_bfe_u32 v16, v1, 4, 1")
    a("v_lshl_add_u32 v15, v16, 5, v15")
    a("v_lshrrev_b32 v16, 1, v25")
    a("v_add3_u32 v17, v15, v16, s37")
    a("v_and_b32 v14, 3, v1")
    a("v_bfe_u32 v15, v1, 3, 2")
    a("v_lshl_add_u32 v14, v15, 2, v14")
    a("v_lshrrev_b32 v16, 1, v15")
    a("v_xor_b32 v15, v15, v16")
    a("v_lshrrev_b32 v16, 2, v1")
    a("v_xor_b32 v15, v15, v16")
    a("v_and_b32 v15, 1, v15")
    a("v_mad_u32_u24 v15, v15, 14, v14")
    a("v_cmp_gt_u32 vcc, 13, v14")
    a("v_cndmask_b32 v15, 13, v15, vcc")
    a("v_lshrrev_b32 v3, 5, v1")
    a("v_mad_u32_u24 v15, v3, 27, v15")
    a("v_lshlrev_b32 v%d, 4, v15" % vA)
    a("v_add_u32 v%d, %d, v%d" % (vA, L_Q0, vA))
    a("v_lshlrev_b32 v%d, 6, v3" % vW)
    a("v_add_u32 v%d, %d, v%d" % (vW, L_WTAB, vW))
    a("v_lshlrev_b32 v%d, 4, v3" % vRot)
    a("v_cmp_ne_u32 s[38:39], 0, v3")
    a("s_mov_b32 s58, -1")
    a("s_mov_b32 s59, 0x3fffff")
    a("s_mul_i32 s40, s35, %d" % FRAG)
    a("s_add_u32 s40, s40, %d" % L_Q0)
    a("v_lshl_add_u32 v18, v1, 4, s40")
    wait_lds(a, vC, vT, S1, 8, sleep=0)
    for k in range(2):
        a("ds_read_b128 %s, v%d offset:%d" % (vr(24 + 4 * k, 4), vC, MX + 16 * k))
    RAW = 52
    for cw in range(8):
        nx = "L_g%d" % (cw + 1)
        a.label("L_g%d" % cw)
        if cw < 7:
            a("s_cmp_lg_u32 s35, %d" % cw)
            a("s_cbranch_scc1 %s" % nx)
        for n in range(12):
            r = min(4 * cw + 32 * (n // 4) + (n % 4), 90)
            d, sa = divmod(r, 13); tb = (sa + d) % 13
            for hf, off in enumerate((26 * sa + tb, 26 * tb + sa)):
                base = 13 if off < 128 else 11
                o = off if off < 128 else off - 128
                a("ds_read2_b32 %s, v%d offset0:%d offset1:%d" % (vr(RAW + 4 * n + 2 * hf, 2), base, o, o + 13))
        if cw < 7: a("s_branch L_gd")
    a.label("L_gd")
    a("s_waitcnt lgkmcnt(14)")
    max_fold(a, 44, 24, 8)
    a("s_add_u32 s44, s44, 0x80")
    w_scale(a, 44, 54)
    a("v_mov_b32 v32, s54")
    a("v_cndmask_b32 v32, 0, v32, s[50:51]")
    a("s_lshl_b32 s41, s35, 2")
    for q in range(4):
        a("s_cmp_lt_u32 s41, %d" % (13 - q))
        a("s_cselect_b32 s40, 0.5, 1.0")
        a("v_mul_f32 v%d, s40, v32" % (33 + q))
    a("s_cmp_eq_u32 s35, 6")
    a("s_cselect_b32 s40, 0, 1.0")
    a("v_mul_f32 v37, s40, v32")
    for k in range(3):
        a("s_waitcnt lgkmcnt(%d)" % (14, 9, 2)[k])
        for q in range(4):
            r = RAW + 4 * (4 * k + q)
            sc = 33 + q if k == 0 else (37 if (k == 2 and q == 3) else 32)
            a("v_perm_b32 v14, v%d, v%d, v22" % (r + 3, r + 2))
            a("v_perm_b32 v15, v%d, v%d, v23" % (r + 3, r + 2))
            a("v_perm_b32 v%d, v%d, v%d, v20" % (r, r, r))
            a("v_perm_b32 v%d, v%d, v%d, v21" % (r + 1, r + 1, r + 1))
            a("v_add_f32 v%d, v%d, v14" % (r, r))
            a("v_add_f32 v%d, v%d, v15" % (r + 1, r + 1))
            a("v_mul_f32 v%d, v%d, v%d" % (r, sc, r))
            a("v_mul_f32 v%d, v%d, v%d" % (r + 1, sc, r + 1))
            a("v_cvt_pk_f16_f32 v%d, v%d, v%d" % (W0R + 4 * k + q, r, r + 1))
        if k == 2:
            a("s_cmp_eq_u32 s35, 7")
            a("s_cbranch_scc1 L_noq0")
        a("s_mov_b64 exec, s[58:59]")
        a("ds_write_b128 v18, %s offset:%d" % (vr(W0R + 4 * k, 4), 8 * FRAG * k))
        a("s_mov_b64 exec, -1")
    a.label("L_noq0")
    a("s_waitcnt lgkmcnt(0)")
    arrive(a, vC, vOne, S3)
    a("s_sub_i32 s44, 0, s44")
    stamp(a)
    a("s_waitcnt vmcnt(0)")
    stamp(a)
    for s in range(2):
        for t in range(7):
            a("ds_read_b64_tr_b16 %s, v17 offset:%d" % (vr(XB[s] + 2 * t, 2), 1664 * s + 256 * t))
    a("s_mov_b32 s40, 0x80008000")
    a("s_waitcnt lgkmcnt(0)")
    arrive(a, vC, vOne, CX)
    for s in range(2):
        m, t, u = TS[s]
        for p in range(13): a("v_and_b32 v%d, 0x7fff7fff, v%d" % (XA + p, XB[s] + p))
        a("v_pk_max_u16 v%d, v%d, v%d" % (m, XA, XA + 1))
        a("v_pk_max_u16 v%d, v%d, v%d" % (t, XA + 2, XA + 3))
        for p in range(4, 13): a("v_pk_max_u16 v%d, v%d, v%d" % ((m, t)[p & 1], (m, t)[p & 1], XA + p))
        a("v_pk_max_u16 v%d, v%d, v%d" % (m, m, t))
        a("v_pk_max_u16 v%d, v%d, v%d op_sel:[0,1] op_sel_hi:[1,0]" % (m, m, m))
        a("v_bfe_u32 v%d, v%d, 7, 8" % (m, m))
        a("v_max_u32 v%d, 21, v%d" % (m, m))
        a("v_subrev_u32 v%d, 133, v%d" % (vNX[s], m))
        a("v_subrev_u32 v%d, 21, v%d" % (m, m))
        a("v_mul_u32_u24 v%d, 0x800080, v%d" % (m, m))
        a("v_mov_b32 v%d, 0" % vS[s])
        a("v_lshl_add_u32 v%d, v%d, 1, s44" % (vE[s], vNX[s]))
        for p in range(13): a("v_pk_sub_u16 v%d, v%d, v%d clamp" % (XA + p, XA + p, m))
        for p in range(13): a("v_lshlrev_b32 v%d, 3, v%d" % (XA + p, XA + p))
        for p in range(13): a("v_and_or_b32 v%d, v%d, s40, v%d" % (X[s] + p, XB[s] + p, XA + p))
    def mkY():
        for s in range(2):
            for p in range(13): a("v_alignbit_b32 v%d, v%d, v%d, v%d" % (Y[s] + p, X[s] + p, X[s] + p, vRot))
    mkY()
    stamp(a)
    wait_lds(a, vC, vT, S3, 8)
    stamp(a)

    def zq(s, r, dst):
        if r >= 91: a("v_mov_b32 v%d, 0" % dst); return
        d, sa = divmod(r, 13); tb = (sa + d) % 13
        a("v_pk_mul_f16 v%d, v%d, v%d" % (dst, X[s] + sa, Y[s] + tb))
    def zl(s, r, dst):
        if r >= 169: a("v_mov_b32 v%d, 0" % dst); return
        il, t = divmod(r, 13)
        a("v_pk_mul_f16 v%d, v%d, v%d op_sel:[%d,0] op_sel_hi:[%d,1]" % (dst, U[s] + il // 2, X[s] + t, il & 1, il & 1))
    def rd(k):
        a("ds_read_b128 %s, v%d offset:%d" % (vr(AF + 4 * (k % 4), 4), vA, FRAG * k))
    def pre():
        for k in range(3): rd(k)
    def body(nst, zf, acc, mid=None, raise6=False):
        for s in range(2):
            for q in range(4): zf(s, q, Z[s] + q)
        for st in range(nst):
            a("s_waitcnt lgkmcnt(%d)" % min(2, nst - 1 - st))
            if st == 6 and raise6:
                lb = newlab("pr")
                a("s_cmp_lg_u32 s49, 0")
                a("s_cbranch_scc1 %s" % lb)
                a("s_setprio 1")
                a.label(lb)
            for s in range(2):
                a("v_mfma_f32_32x32x16_f16 %s, %s, %s, %s" % (vr(acc[s], 16), vr(AF + 4 * (st % 4), 4), vr(Z[s], 4), "0" if st == 0 else vr(acc[s], 16)))
                if s == 1 and st + 3 < nst: rd(st + 3)
                if st + 1 < nst:
                    for q in range(4): zf(s, 4 * (st + 1) + q, Z[s] + q)
            if mid and st == mid[0]: mid[1]()
    def wload():
        for g in range(4):
            a("ds_read_b128 %s, v%d offset:%d" % (vr(WC + 4 * g, 4), vW, 16 * g))
    def dot(s, wbase, ebase):
        m, t, u = TS[s]
        a("v_mul_f32 v%d, v%d, v%d" % (u, wbase, ACC[s]))
        for j in range(1, 13): a("v_fmac_f32 v%d, v%d, v%d" % (u, wbase + j, ACC[s] + j))
        a("v_ldexp_f32 v%d, v%d, v%d" % (u, u, ebase))
        a("v_add_f32 v%d, v%d, v%d" % (vS[s], vS[s], u))
    def trans():
        for s in range(2):
            ac = ACC[s]; m, t, u = TS[s]
            a("v_max3_f32 v%d, |v%d|, |v%d|, |v%d|" % (m, ac, ac + 1, ac + 2))
            a("v_max3_f32 v%d, |v%d|, |v%d|, |v%d|" % (t, ac + 3, ac + 4, ac + 5))
            a("v_max3_f32 v%d, v%d, |v%d|, |v%d|" % (m, m, ac + 6, ac + 7))
            a("v_max3_f32 v%d, v%d, |v%d|, |v%d|" % (t, t, ac + 8, ac + 9))
            a("v_max3_f32 v%d, v%d, |v%d|, |v%d|" % (m, m, ac + 10, ac + 11))
            a("v_max3_f32 v%d, v%d, v%d, |v%d|" % (m, m, t, ac + 12))
            a("v_mov_b32 v%d, v%d" % (t, m))
        for s in range(2):
            m, t, u = TS[s]
            a("v_permlane32_swap_b32 v%d, v%d" % (m, t))
        for s in range(2):
            m, t, u = TS[s]
            a("v_max_f32 v%d, v%d, v%d" % (m, m, t))
            a("v_frexp_exp_i32_f32 v%d, v%d" % (m, m))
            a("v_sub_u32 v%d, 8, v%d" % (m, m))
            a("v_min_i32 v%d, 126, v%d" % (m, m))
            a("v_ldexp_f32 v%d, 1.0, v%d" % (t, m))
        for s in range(2):
            m, t, u = TS[s]
            if s == 0: a("s_waitcnt lgkmcnt(0)")
            dot(s, WC, vE[s])
            a("v_sub_u32 v%d, v%d, v%d" % (vE[s], vE[s], m))
            a("v_add_u32 v%d, v%d, v%d" % (vE[s], vE[s], vNX[s]))
        for s in range(2):
            ac = ACC[s]; m, t, u = TS[s]
            for j in range(13): a("v_mul_f32 v%d, v%d, v%d" % (ac + j, t, ac + j))
            for p in range(7): a("v_cvt_pk_f16_f32 v%d, v%d, v%d" % (U[s] + p, ac + 2 * p, ac + min(2 * p + 1, 12)))
    a("s_setprio 3")
    pre()
    def early_poll():
        lb = newlab("ep")
        a("s_cmp_lg_u32 s35, 0")
        a("s_cbranch_scc1 %s" % lb)
        a("buffer_load_ushort v%d, v3, s[16:19], 0 offen sc0 sc1" % vF)
        a.label(lb)
    srd(a, 16, "dbg")
    srd(a, 12, "ws", size=P2_OFF - P1_OFF, off=P1_OFF)
    a("v_mov_b32 v3, 0")
    body(23, zq, ACC, mid=(OPT.get("pollst", 14), early_poll))
    a("s_setprio 2")
    stamp(a)
    a("s_cmp_ge_u32 s35, 4")
    a("s_cbranch_scc1 L_cin_hi2")
    a("s_cmp_lg_u32 s35, 0")
    a("s_cbranch_scc1 L_cin_low")
    a("s_waitcnt vmcnt(0)")
    a("v_readfirstlane_b32 s61, v%d" % vF)
    a("s_cmp_eq_u32 s61, 0x101")
    a("s_cbranch_scc1 L_cin_f1")
    poll_flag(a, vT, 3, 16, "buffer_load_ushort", 0x101, OPT.get("f1sleep", 4))
    a.label("L_cin_f1")
    arrive(a, vC, vOne, CX)
    a.label("L_cin_low")
    a("v_lshlrev_b32 v3, 4, v1")
    a("s_lshl_b32 s40, s35, 10")
    wait_lds(a, vC, vT, CX, 9)
    for k in range(19):
        a("s_add_u32 s41, s40, %d" % (4096 * k))
        if k == 18: a("s_min_u32 s41, s41, %d" % ((P1_UNITS - 1) * 1024))
        a("s_add_u32 m0, s41, %d" % L_P1)
        a("buffer_load_dwordx4 v3, s[12:15], s41 offen%s lds" % SC)
    a.label("L_cin_hi2")
    a("v_add_u32 v%d, %d, v%d" % (vA, 23 * FRAG + 16, vA))
    a("s_mov_b32 s42, 0")
    a("v_add_u32 v3, %d, v%d" % (C2, vC))
    a("s_mov_b32 s46, %d" % L_P1)
    a("s_mov_b32 s49, 1")
    a("s_nop 7")
    a.label("L_layer")
    wload()
    trans()
    a("s_lshr_b32 s41, s42, 1")
    a("s_lshr_b32 s40, s35, 2")
    a("s_or_b32 s41, s41, s40")
    a("s_cbranch_scc1 L_noarr")
    a("s_waitcnt vmcnt(9)")
    arrive(a, 3, vOne, 0)
    a.label("L_noarr")
    wait_lds(a, 3, vT, 0, 4)
    a("v_mov_b32 v7, s46")
    a("ds_read_b32 v7, v7")
    pre()
    a("s_waitcnt lgkmcnt(3)")
    for s in range(2):
        a("v_sub_u32 v%d, v%d, v7" % (vE[s], vE[s]))
    stamp_loop(a, 42, 2, 0, 0)
    body(43, zl, ACC, raise6=True)
    a("s_setprio 0")
    a("s_cmp_lg_u32 s42, 0")
    a("s_cbranch_scc1 L_not0")
    a("s_setprio 1")
    a("s_waitcnt vmcnt(0)")
    arrive(a, vC, vOne, C6)
    a.label("L_not0")
    stamp_loop(a, 42, 2, 1, 6)
    a("v_add_u32 v%d, 128, v%d" % (vW, vW))
    a("s_lshr_b32 s41, s35, 2")
    a("s_cmp_eq_u32 s42, 1")
    a("s_mov_b32 s43, %d" % (43 * FRAG))
    a("s_cselect_b32 s43, 0x%x, s43" % ((-L_L2) & 0xffffffff))
    a("s_mov_b32 s46, %d" % (L_P1 + 8))
    a("s_cselect_b32 s46, %d, s46" % (68 * FRAG + 8))
    a("s_cselect_b32 s41, s41, 0")
    a("s_xor_b32 s49, s41, 1")
    a("v_add_u32 v%d, s43, v%d" % (vA, vA))
    a("v_add_u32 v3, 4, v3")
    a("s_add_u32 s42, s42, 1")
    a("s_cmp_lt_u32 s42, 3")
    a("s_cbranch_scc1 L_layer")
    srd(a, 16, "dbg")
    a("s_add_u32 s28, s4, 8")
    a("v_mov_b32 v3, s28")
    a("buffer_load_ubyte v%d, v3, s[16:19], 0 offen sc0 sc1" % vF)
    srd(a, 24, "bout")
    a("v_subrev_u32 v7, 14, v1")
    a("v_lshlrev_b32 v7, 4, v7")
    a("v_mov_b32 v%d, 0" % vB)
    a("buffer_load_short_d16_hi v%d, v7, s[24:27], 0 offen" % vB)
    wload()
    rd(23); rd(24)
    a("v_mov_b32 v7, %d" % (68 * FRAG))
    a("ds_read_b64 v[50:51], v7")
    for s in range(2):
        for p in range(6): a("v_cndmask_b32 v%d, v%d, v%d, s[38:39]" % (FL[s] + p, X[s] + p, X[s] + p + 7))
        a("v_cndmask_b32 v%d, v%d, 0, s[38:39]" % (FL[s] + 6, X[s] + 6))
        a("v_mov_b32 v%d, 0" % (FL[s] + 7))
    a("s_waitcnt lgkmcnt(0)")
    for s in range(2): dot(s, WC, vE[s])
    for k in range(2):
        for s in range(2):
            a("v_mfma_f32_32x32x16_f16 %s, %s, %s, %s" % (vr(ACG[s], 16), vr(AF + 4 * ((23 + k) % 4), 4), vr(FL[s] + 4 * k, 4), "0" if k == 0 else vr(ACG[s], 16)))
    pre()
    mkY()
    for s in range(2):
        m, t, u = TS[s]
        a("v_add_u32 v%d, v%d, v%d" % (vE[s], vE[s], vNX[s]))
        a("v_sub_u32 v%d, v%d, v51" % (m, vE[s]))
        dot(s, ACG[s], m)
        a("v_add_u32 v%d, v%d, v%d" % (vE[s], vE[s], vNX[s]))
        a("v_sub_u32 v%d, v%d, v50" % (vE[s], vE[s]))
    def fetch_loads():
        srd(a, 20, "ws", size=32 * 14 * 512, off=WS_PART)
        a("s_mul_i32 s28, s4, %d" % (14 * 512))
        a("s_and_b32 s29, s36, 127")
        a("s_lshl_b32 s29, s29, 2")
        a("s_add_u32 s28, s28, s29")
        a("v_lshlrev_b32 v3, 9, v1")
        a("v_cmp_gt_u32 vcc, 14, v1")
        a("v_mov_b32 v7, %s" % BIG)
        a("v_cndmask_b32 v3, v7, v3, vcc")
        a("buffer_load_dwordx2 %s, v3, s[20:23], s28 offen%s" % (vr(vP, 2), SC))
    def fetch_part():
        a("s_waitcnt vmcnt(0)")
        a("v_readfirstlane_b32 s48, v%d" % vF)
        a("s_cmp_lg_u32 s48, 1")
        a("s_cbranch_scc1 L_notyet")
        fetch_loads()
        a.label("L_notyet")
    stamp(a)
    body(23, zq, ACG, mid=(8, fetch_part))
    stamp(a)
    a("s_cmp_eq_u32 s48, 1")
    a("s_cbranch_scc1 L_havepart")
    poll_flag(a, vF, 3, 16, "buffer_load_ubyte", 1, 16)
    fetch_loads()
    a.label("L_havepart")
    srd(a, 16, "out")
    a("s_lshl_b32 s28, s36, 1")
    a("v_mov_b32 v3, s28")
    a("s_waitcnt vmcnt(0)")
    for s in range(2):
        a("v_add_f32 v%d, v%d, v%d" % (vS[s], vS[s], vP + s))
        a("v_add_f32 v%d, v%d, v%d" % (vS[s], vS[s], vB))
    for s in range(2): dot(s, ACG[s], vE[s])
    for mod in ("row_shr:1 row_mask:0xf bank_mask:0xf bound_ctrl:0", "row_shr:2 row_mask:0xf bank_mask:0xf bound_ctrl:0", "row_shr:4 row_mask:0xf bank_mask:0xf bound_ctrl:0", "row_shr:8 row_mask:0xf bank_mask:0xf bound_ctrl:0", "row_bcast:15 row_mask:0xa bank_mask:0xf", "row_bcast:31 row_mask:0xc bank_mask:0xf"):
        for s in range(2):
            a("v_add_f32_dpp v%d, v%d, v%d %s" % (vS[s], vS[s], vS[s], mod))
    a("v_cvt_pk_bf16_f32 v2, v%d, v%d" % (vS[0], vS[1]))
    a("v_cmp_eq_u32 vcc, 63, v1")
    a("s_and_saveexec_b64 s[6:7], vcc")
    a("buffer_store_dword v2, v3, s[16:19], 0 offen")
    stamp_flush(a)

def main(out):
    a = Asm()
    a.raw("; @launch grid=(256,1,1) block=(768,1,1) lds=%d" % LDS_BYTES)
    a.raw('.amdgcn_target "amdgcn-amd-amdhsa--gfx950"\n.text')
    name = NAME + "_kernel"
    a.raw(".globl %s\n.p2align 8\n.type %s,@function" % (name, name))
    a.label(name)
    a("s_cmp_ge_u32 s2, 256")
    a("s_cbranch_scc1 L_end")
    if DIAG:
        a("s_memrealtime s[86:87]")
        a("s_memtime s[88:89]")
    a("s_load_dwordx16 s[64:79], s[0:1], 0")
    a("s_load_dwordx4 s[80:83], s[0:1], 64")
    a("s_load_dwordx2 s[84:85], s[0:1], 80")
    a("v_lshrrev_b32 v2, 6, v0")
    a("v_and_b32 v1, 63, v0")
    a("v_readfirstlane_b32 s3, v2")
    a("s_and_b32 s6, s2, 7")
    a("s_lshl_b32 s4, s6, 2")
    a("s_lshr_b32 s7, s2, 6")
    a("s_add_u32 s4, s4, s7")
    a("s_lshl_b32 s62, s7, 3")
    a("s_add_u32 s62, s62, s6")
    a("s_bfe_u32 s5, s2, 0x30003")
    a("s_waitcnt lgkmcnt(0)")
    if DIAG:
        a("v_mov_b32 v167, 0")
        a("v_writelane_b32 v167, s86, 0")
        a("v_writelane_b32 v167, s88, 1")
    a("s_cmp_lt_u32 s3, 4")
    a("s_cbranch_scc1 L_dnn")
    _st[0] = 2
    cin(a)
    a.label("L_end")
    a("s_endpgm")
    a.label("L_dnn"); a.reset_hist()
    _st[0] = 2
    dnn(a)
    a.raw('.section .rodata,"a"\n.p2align 6')
    a.raw(""".amdhsa_kernel %s
  .amdhsa_next_free_vgpr 168
  .amdhsa_next_free_sgpr 102
  .amdhsa_accum_offset 168
  .amdhsa_group_segment_fixed_size 0
  .amdhsa_kernarg_size 88
  .amdhsa_user_sgpr_count 2
  .amdhsa_user_sgpr_kernarg_segment_ptr 1
  .amdhsa_system_sgpr_workgroup_id_x 1
.end_amdhsa_kernel""" % name)
    open(out, "w").write(a.text())
    print("instrs", a.ninstr, "nops", a.nops, file=sys.stderr)

if __name__ == "__main__":
    if "--diag" in sys.argv:
        DIAG = True; sys.argv.remove("--diag")
    for x in list(sys.argv):
        if x.startswith("-D"):
            k, _, v = x[2:].partition("="); OPT[k] = int(v or 1); sys.argv.remove(x)
    main(sys.argv[1] if len(sys.argv) > 1 else "cdna_kernels/%s.s" % NAME)
```
